```python
import torch

def _softmax(x, axis=-1):
    return torch.softmax(x, dim=axis)
def _gelu(x):
    return torch.nn.functional.gelu(x, approximate="tanh")
def _silu(x):
    return torch.nn.functional.silu(x)
def _sigmoid(x):
    return torch.sigmoid(x)
def _layernorm(x, axis=-1, eps=1e-5):
    m = x.mean(dim=axis, keepdim=True)
    v = x.var(dim=axis, keepdim=True, unbiased=False)
    return (x - m) / torch.sqrt(v + eps)
def _scatter_add(tgt, idx, src, axis=0):
    return tgt.clone().index_add_(axis, idx, src)
def _segment_sum(src, seg, n):
    out = torch.zeros((n,) + src.shape[1:], dtype=src.dtype)
    return out.index_add_(0, seg, src)
def _pad(x, pw):
    flat = tuple(v for pair in reversed(pw) for v in pair)
    return torch.nn.functional.pad(x, flat)

kernel_name = 'standalone__dense_activation_gelu__prompt'

def setup_inputs():

    _w = (lambda a: (lambda t: t.to(torch.bfloat16) if t.is_floating_point() else t)(torch.as_tensor(a)))
    B, S, D, F = 1, 2048, 640, 1728
    return {
        "x": _w((lambda *s: torch.randn(*s, dtype=torch.bfloat16) * 0.05)(B, S, D)),
        "w1": _w((lambda *s: torch.randn(*s, dtype=torch.bfloat16) * 3.2)(D, F) * (D ** -0.5)),
        "b1": _w((lambda *s: torch.randn(*s, dtype=torch.bfloat16) * 3.2)(F) * 0.01),
        "w2": _w((lambda *s: torch.randn(*s, dtype=torch.bfloat16) * 0.05)(F, D) * (F ** -0.5)),
        "b2": _w((lambda *s: torch.randn(*s, dtype=torch.bfloat16) * 0.1)(D) * 0.01),
    }

def reference(x, w1, b1, w2, b2):
    h = torch.einsum("bsd,df->bsf", x, w1) + b1
    h = _gelu(h)
    return torch.einsum("bsf,fd->bsd", h, w2) + b2
```

```python
import argparse

KNAME = "standalone__dense_activation_gelu__prompt_kernel"
M, D, F = 2048, 640, 1728
WS_EPOCH = 0
WS_F1 = 4096
WS_F2 = 8192
WS_STAMP = 12 << 20
WS_WP = 1 << 20
WS_H = 4 << 20
WS_SIZE = 16 << 20
OOB = 0x40000000
SPIN_MAX = 400000

LDS_X = 0
LDS_W = 49152
LDS_PART = 98304
LDS_TR = 0
LDS_BYTES = 163840

sX, sW1, sWS, sOUT, sW2, sB1, sB2, sDBG = 8, 12, 16, 20, 24, 28, 32, 36
sKA = 40
sWV, sJ, sI = 3, 4, 5
sRB, sCT, sRT, sNT = 56, 57, 58, 59
sTAG = 60
sXO, sWO, sSL = 61, 62, 63
sT0, sT1, sT2, sT3 = 64, 65, 66, 67
sMX, sMW = 68, 69
sHB = 70
sC1 = 86
sWPB = 88
sSPIN = 89
sMSK = 90
sST = 92
sWM, sWF = 94, 95
sHS0, sHS1 = 96, 97
sCODE = 24

vLANE = 1
vT = [2, 3, 4, 5, 6, 7]
vC0 = 8
vL16 = 10
vL16B = 11
vPOLL, vPA1, vPA2 = 12, 13, 14
vTAG = 15
vXD, vWD = 16, 20
vXR, vWR = 24, 28
vHS = 30
vSTA = 31
vFA, vFB = 36, 52
vACC = 68
vGT = 132
vGO = 164
vH = 132
vA2 = [36, 56, 76, 196]
vB2 = 216
vPW = 226
vPR = 229
vW2V = 232
NHB = 16


class Asm:
    def __init__(self):
        self.l = []
        self.vm = []
        self.nst = 0

    def e(self, s):
        self.l.append("    " + s)

    def lab(self, s):
        self.l.append(s + ":")

    def c(self, s):
        self.l.append("    ; " + s)

    def vmop(self, s, tag):
        self.e(s)
        self.vm.append(tag)

    def vmn(self, tag):
        idx = max(i for i, t in enumerate(self.vm) if t == tag)
        n = len(self.vm) - idx - 1
        self.vm = self.vm[idx + 1:]
        return min(n, 63)

    def wait_vm(self, tag, extra=""):
        self.e(f"s_waitcnt vmcnt({self.vmn(tag)}){extra}")

    def wait_vm0(self):
        self.vm = []
        self.e("s_waitcnt vmcnt(0)")


def vr(a, n):
    return f"v[{a}:{a+n-1}]"


def srd(r):
    return f"s[{r}:{r+3}]"


def w2reg(j):
    return f"a[{4*j}:{4*j+3}]" if j < 64 else vr(vW2V + 4 * (j - 64), 4)


def build(o):
    a = Asm()
    e = a.e

    def stamp(k):
        if not o.stamps:
            return
        e(f"s_memtime s[{sST}:{sST+1}]")
        e("s_waitcnt lgkmcnt(0)")
        e(f"v_writelane_b32 v{vSTA}, s{sST}, {k}")

    def mk_srd(r, p, n):
        e(f"s_mov_b32 s{r}, s{p}")
        e(f"s_mov_b32 s{r+1}, s{p+1}")
        e(f"s_mov_b32 s{r+2}, {n}")
        e(f"s_mov_b32 s{r+3}, 0x20000")

    def spin(label, load, cmp_ne_tag=True):
        e(f"s_mov_b32 s{sSPIN}, 0")
        a.lab(label)
        e(load)
        e("s_waitcnt vmcnt(0)")
        e(f"v_cmp_ne_u32 s[{sMSK}:{sMSK+1}], s{sTAG}, v{vPOLL}")
        e(f"s_add_u32 s{sSPIN}, s{sSPIN}, 1")
        e(f"s_cmp_eq_u64 s[{sMSK}:{sMSK+1}], 0")
        e(f"s_cbranch_scc1 {label}_ok")
        e(f"s_cmp_lt_u32 s{sSPIN}, {SPIN_MAX}")
        e(f"s_cbranch_scc1 {label}")
        a.lab(label + "_ok")
        a.vm = []

    def spin_tag(label):
        e(f"s_mov_b32 s{sSPIN}, 0")
        a.lab(label)
        e(f"buffer_load_dword v{vTAG}, off, {srd(sDBG)}, 0 sc1")
        e("s_waitcnt vmcnt(0)")
        e(f"v_readfirstlane_b32 s{sTAG}, v{vTAG}")
        e(f"s_add_u32 s{sSPIN}, s{sSPIN}, 1")
        e(f"s_cmp_lg_u32 s{sTAG}, 0")
        e(f"s_cbranch_scc1 {label}_ok")
        e(f"s_cmp_lt_u32 s{sSPIN}, {SPIN_MAX}")
        e(f"s_cbranch_scc1 {label}")
        a.lab(label + "_ok")
        a.vm = []

    def w2load(j):
        if j % 4 == 0:
            e(f"s_add_u32 s{sT3}, s{sWPB}, {j*1024}")
        v = vL16B if j >= 60 else vL16
        a.vmop(f"buffer_load_dwordx4 {w2reg(j)}, v{v}, {srd(sWS)}, s{sT3} offen offset:{(j%4)*1024} sc1", "w2")

    a.lab(KNAME)
    if o.stamps:
        e(f"s_memtime s[{sST}:{sST+1}]")
    e("s_cmp_ge_u32 s2, 256")
    e("s_cbranch_scc1 L_end")
    e(f"s_load_dwordx16 s[{sKA}:{sKA+15}], s[0:1], 0")
    e(f"v_lshrrev_b32 v{vT[0]}, 6, v0")
    e(f"v_and_b32 v{vLANE}, 63, v0")
    e(f"v_readfirstlane_b32 s{sWV}, v{vT[0]}")
    e(f"s_and_b32 s{sJ}, s2, 7")
    e(f"s_lshr_b32 s{sI}, s2, 3")
    e(f"v_lshlrev_b32 v{vL16}, 4, v{vLANE}")
    a.c("phase-2 tile: rt = 8*(j>>1) + (i>>2), nt = 4*(j&1) + (i&3)")
    e(f"s_lshr_b32 s{sT0}, s{sJ}, 1")
    e(f"s_lshl_b32 s{sRT}, s{sT0}, 3")
    e(f"s_lshr_b32 s{sT1}, s{sI}, 2")
    e(f"s_add_u32 s{sRT}, s{sRT}, s{sT1}")
    e(f"s_and_b32 s{sT1}, s{sJ}, 1")
    e(f"s_lshl_b32 s{sNT}, s{sT1}, 2")
    e(f"s_and_b32 s{sT2}, s{sI}, 3")
    e(f"s_add_u32 s{sNT}, s{sNT}, s{sT2}")
    a.c("phase-1 tile: rb = 4*(j>>1) + i/7, ct = 7*(j&1) + i%7")
    e(f"s_mul_i32 s{sT2}, s{sI}, 37")
    e(f"s_lshr_b32 s{sT2}, s{sT2}, 8")
    e(f"s_mul_i32 s{sT3}, s{sT2}, 7")
    e(f"s_sub_u32 s{sT3}, s{sI}, s{sT3}")
    e(f"s_lshl_b32 s{sRB}, s{sT0}, 2")
    e(f"s_add_u32 s{sRB}, s{sRB}, s{sT2}")
    e(f"s_mul_i32 s{sCT}, s{sT1}, 7")
    e(f"s_add_u32 s{sCT}, s{sCT}, s{sT3}")
    if o.rot == 0:
        e(f"s_mov_b32 s{sSL}, 0")
    elif o.rot == 2:
        e(f"s_add_u32 s{sSL}, s{sT2}, s{sT3}")
        e(f"s_and_b32 s{sSL}, s{sSL}, 1")
        e(f"s_mul_i32 s{sSL}, s{sSL}, 5")
    elif o.rot == 4:
        e(f"s_add_u32 s{sSL}, s{sT2}, s{sT3}")
        e(f"s_and_b32 s{sSL}, s{sSL}, 3")
        e(f"s_mul_i32 s{sSL}, s{sSL}, 5")
        e(f"s_lshr_b32 s{sSL}, s{sSL}, 1")
    e(f"s_lshr_b32 s{sWM}, s{sWV}, 1")
    e(f"s_and_b32 s{sWF}, s{sWV}, 1")
    e(f"s_cmp_eq_u32 s{sWV}, 3")
    e(f"s_cselect_b32 s{sT0}, {OOB}, 0")
    e(f"v_or_b32 v{vL16B}, s{sT0}, v{vL16}")
    a.c("packed-w2 base of this wave and polling addresses")
    e(f"s_mul_i32 s{sWPB}, s{sNT}, 54")
    e(f"s_mul_i32 s{sT0}, s{sWV}, 14")
    e(f"s_add_u32 s{sWPB}, s{sWPB}, s{sT0}")
    e(f"s_mul_i32 s{sWPB}, s{sWPB}, 5120")
    e(f"s_add_u32 s{sWPB}, s{sWPB}, {WS_WP}")
    e(f"v_min_u32 v{vPA2}, 13, v{vLANE}")
    e(f"v_add_u32 v{vPA2}, s{sT0}, v{vPA2}")
    e(f"v_min_u32 v{vPA2}, 53, v{vPA2}")
    e(f"s_lshr_b32 s{sT1}, s{sNT}, 2")
    e(f"s_lshl_b32 s{sT1}, s{sT1}, 8")
    e(f"s_add_u32 s{sT1}, s{sT1}, {WS_F2}")
    e(f"v_lshl_add_u32 v{vPA2}, v{vPA2}, 2, s{sT1}")
    e(f"s_mul_i32 s{sT0}, s{sWV}, 7")
    e(f"v_min_u32 v{vPA1}, 6, v{vLANE}")
    e(f"v_add_u32 v{vPA1}, s{sT0}, v{vPA1}")
    e(f"v_min_u32 v{vPA1}, 26, v{vPA1}")
    e(f"s_lshl_b32 s{sT1}, s{sRT}, 7")
    e(f"s_add_u32 s{sT1}, s{sT1}, {WS_F1}")
    e(f"v_lshl_add_u32 v{vPA1}, v{vPA1}, 2, s{sT1}")
    if o.stamps:
        e(f"v_mov_b32 v{vSTA}, 0")
    e(f"s_cmp_ge_u32 s{sI}, 28")
    e("s_cbranch_scc1 L_helper")

    a.c("x staging offsets: row = 8n + (lane>>3), chunk = (lane&7) ^ ((4n + (lane>>4)) & 7)")
    t0, t1, t2, t3, t4, t5 = vT
    e(f"v_lshrrev_b32 v{t0}, 3, v{vLANE}")
    e(f"v_mul_u32_u24 v{t0}, 1280, v{t0}")
    e(f"v_and_b32 v{t1}, 7, v{vLANE}")
    e(f"v_lshrrev_b32 v{t2}, 4, v{vLANE}")
    e(f"v_xor_b32 v{t1}, v{t1}, v{t2}")
    e(f"v_xor_b32 v{t3}, 4, v{t1}")
    e(f"v_lshl_add_u32 v{vXD}, v{t1}, 4, v{t0}")
    e(f"v_lshl_add_u32 v{vXD+1}, v{t3}, 4, v{t0}")
    e(f"v_add_u32 v{vXD+2}, {2*(10240-1024)}, v{vXD}")
    e(f"v_add_u32 v{vXD+3}, {3*(10240-1024)}, v{vXD+1}")
    e(f"v_add_u32 v{vXD+1}, {10240-1024}, v{vXD+1}")
    a.c("w1 staging offsets: row = 4n + (lane>>4), chunk = (lane&15) ^ ((lane>>4) << 2)")
    e(f"v_mul_u32_u24 v{t0}, 3456, v{t2}")
    e(f"v_and_b32 v{t1}, 15, v{vLANE}")
    e(f"v_lshlrev_b32 v{t3}, 2, v{t2}")
    e(f"v_xor_b32 v{t1}, v{t1}, v{t3}")
    e(f"v_lshl_add_u32 v{vWD}, v{t1}, 4, v{t0}")
    e(f"s_cmp_eq_u32 s{sCT}, 13")
    e(f"s_cselect_b32 s{sT0}, 8, 16")
    e(f"v_mov_b32 v{t3}, {OOB}")
    e(f"v_cmp_gt_u32 vcc, s{sT0}, v{t1}")
    e(f"s_mul_i32 s{sXO}, s{sRB}, {128*1280}")
    e(f"s_mul_i32 s{sT1}, s{sWV}, {32*1280}")
    e(f"v_cndmask_b32 v{vWD}, v{t3}, v{vWD}, vcc")
    for n in range(1, 4):
        e(f"v_add_u32 v{vWD+n}, {n*(4*3456-1024)}, v{vWD}")
    e(f"s_add_u32 s{sXO}, s{sXO}, s{sT1}")
    e(f"s_lshl_b32 s{sT1}, s{sSL}, 7")
    e(f"s_add_u32 s{sXO}, s{sXO}, s{sT1}")
    e(f"s_lshl_b32 s{sWO}, s{sCT}, 8")
    e(f"s_mul_i32 s{sT1}, s{sWV}, {16*3456}")
    e(f"s_add_u32 s{sWO}, s{sWO}, s{sT1}")
    e(f"s_mul_i32 s{sT1}, s{sSL}, {64*3456}")
    e(f"s_add_u32 s{sWO}, s{sWO}, s{sT1}")
    e(f"s_lshl_b32 s{sMX}, s{sWV}, 12")
    e(f"s_add_u32 s{sMW}, s{sMX}, {LDS_W}")
    a.c("b1 offset: (128ct + 64wf + 4*(lane>>5)) * 2")
    e(f"v_lshrrev_b32 v{t4}, 5, v{vLANE}")
    e(f"v_lshlrev_b32 v{t5}, 3, v{t4}")
    e(f"s_lshl_b32 s{sT1}, s{sCT}, 8")
    e(f"s_lshl_b32 s{sT2}, s{sWF}, 7")
    e(f"s_add_u32 s{sT2}, s{sT1}, s{sT2}")
    e("s_waitcnt lgkmcnt(0)")
    if o.stamps:
        e(f"v_writelane_b32 v{vSTA}, s{sST}, 0")
    mk_srd(sB1, sKA + 4, F * 2)
    mk_srd(sX, sKA + 0, M * D * 2)
    mk_srd(sW1, sKA + 2, D * F * 2)
    for q in range(8):
        a.vmop(f"buffer_load_dwordx2 {vr(vGT+2*q, 2)}, v{t5}, {srd(sB1)}, s{sT2} offen offset:{16*q}", "b1")

    def slab_ops(s):
        slot = s % 3
        ops = []

        def mx():
            e(f"s_add_u32 m0, s{sMX}, {slot*16384}")

        def mw():
            e(f"s_add_u32 m0, s{sMW}, {slot*16384}")

        def ld(n, isx):
            def f():
                if n == 0:
                    (mx if isx else mw)()
                    e("s_nop 0")
                if isx:
                    a.vmop(f"buffer_load_dwordx4 v{vXD+n}, {srd(sX)}, s{sXO} offen offset:{n*1024} lds", f"s{s}")
                else:
                    a.vmop(f"buffer_load_dwordx4 v{vWD+n}, {srd(sW1)}, s{sWO} offen offset:{n*1024} lds", f"s{s}")
                if n == 3 and not isx and s < 9:
                    if o.rot:
                        e(f"s_add_u32 s{sSL}, s{sSL}, 1")
                        e(f"s_cmp_eq_u32 s{sSL}, 10")
                        e(f"s_cselect_b32 s{sT0}, -9, 1")
                        e(f"s_cselect_b32 s{sT1}, s{sHS0}, s{sHS1}")
                        e(f"s_lshl_b32 s{sT0}, s{sT0}, 7")
                        e(f"s_add_u32 s{sWO}, s{sWO}, s{sT1}")
                        e(f"s_add_u32 s{sXO}, s{sXO}, s{sT0}")
                    else:
                        e(f"s_add_u32 s{sXO}, s{sXO}, 128")
                        e(f"s_add_u32 s{sWO}, s{sWO}, {64*3456}")
            return f
        for n in range(4):
            ops.append(ld(n, True))
        for n in range(4):
            ops.append(ld(n, False))
        return ops

    if o.rot:
        e(f"s_mov_b32 s{sHS0}, {-9*64*3456 & 0xffffffff}")
        e(f"s_mov_b32 s{sHS1}, {64*3456}")
    for s in range(2):
        for f in slab_ops(s):
            f()
    stamp(1)
    mk_srd(sWS, sKA + 14, WS_SIZE)
    mk_srd(sDBG, sKA + 12, 256)
    mk_srd(sOUT, sKA + 10, M * D * 2)
    mk_srd(sB2, sKA + 8, D * 2)
    a.c("fragment read addresses")
    e(f"v_and_b32 v{t0}, 31, v{vLANE}")
    e(f"s_lshl_b32 s{sT0}, s{sWM}, 13")
    e(f"v_lshl_add_u32 v{t1}, v{t0}, 7, s{sT0}")
    e(f"v_bfe_u32 v{t0}, v{vLANE}, 1, 3")
    e(f"v_xor_b32 v{t0}, v{t0}, v{t4}")
    for ks in range(4):
        e(f"v_xor_b32 v{t2}, {2*ks}, v{t0}")
        e(f"v_lshl_add_u32 v{vXR+ks}, v{t2}, 4, v{t1}")
    e(f"v_bfe_u32 v{t0}, v{vLANE}, 2, 2")
    e(f"v_lshl_add_u32 v{t1}, v{t4}, 3, v{t0}")
    e(f"v_lshlrev_b32 v{t1}, 8, v{t1}")
    e(f"s_lshl_b32 s{sT0}, s{sWF}, 1")
    e(f"v_xor_b32 v{t0}, s{sT0}, v{t0}")
    e(f"v_lshl_add_u32 v{t1}, v{t0}, 6, v{t1}")
    e(f"v_bfe_u32 v{t0}, v{vLANE}, 4, 1")
    e(f"v_lshl_add_u32 v{t1}, v{t0}, 5, v{t1}")
    e(f"v_and_b32 v{t2}, 3, v{vLANE}")
    e(f"v_lshl_add_u32 v{t1}, v{t2}, 3, v{t1}")
    e(f"v_add_u32 v{vWR}, {LDS_W}, v{t1}")
    e(f"v_xor_b32 v{vWR+1}, 64, v{vWR}")
    a.c("h store offset: ((lane>>4)&1)*54 KiB + (lane>>5)*256 + (lane&15)*16")
    e(f"v_mul_u32_u24 v{vHS}, {54*1024}, v{t0}")
    e(f"v_lshl_add_u32 v{vHS}, v{t4}, 8, v{vHS}")
    e(f"v_and_b32 v{t2}, 15, v{vLANE}")
    e(f"v_lshl_add_u32 v{vHS}, v{t2}, 4, v{vHS}")
    e(f"v_mov_b32 v{vC0}, 0xc0135761")
    e(f"v_mov_b32 v{vC0+1}, 0xc0135761")
    e(f"s_mov_b32 s{sC1}, 0xbdd2d3e8")
    e(f"s_mov_b32 s{sC1+1}, 0xbdd2d3e8")
    a.c("accumulators start from b1")
    a.wait_vm("b1")
    acc = lambda tf, tm: vACC + 16 * (2 * tm + tf)
    for tf in range(2):
        for q in range(4):
            src = vGT + 2 * (4 * tf + q)
            d = acc(tf, 0) + 4 * q
            e(f"v_lshlrev_b32 v{d}, 16, v{src}")
            e(f"v_and_b32 v{d+1}, 0xffff0000, v{src}")
            e(f"v_lshlrev_b32 v{d+2}, 16, v{src+1}")
            e(f"v_and_b32 v{d+3}, 0xffff0000, v{src+1}")
    for tf in range(2):
        for r in range(16):
            e(f"v_mov_b32 v{acc(tf,1)+r}, v{acc(tf,0)+r}")

    fa = lambda b, t: vFA + 8 * b + 4 * t
    fb = lambda b, t: vFB + 8 * b + 4 * t

    def reads(s, ks):
        b = ks & 1
        slot = s % 3
        r = []
        for t in range(2):
            r.append(f"ds_read_b128 {vr(fb(b,t),4)}, v{vXR+ks} offset:{slot*16384 + t*4096}")
            for h in range(2):
                r.append(f"ds_read_b64_tr_b16 {vr(fa(b,t)+2*h,2)}, v{vWR+t} offset:{slot*16384 + ks*4096 + h*1024}")
        return r

    def mfmas(ks):
        b = ks & 1
        return [f"v_mfma_f32_32x32x16_bf16 {vr(acc(tf,tm),16)}, {vr(fa(b,tf),4)}, {vr(fb(b,tm),4)}, {vr(acc(tf,tm),16)}"
                for tm in range(2) for tf in range(2)]

    for it in range(10):
        a.c(f"slab {it}")
        a.wait_vm(f"s{it}", " lgkmcnt(0)")
        e("s_barrier")
        if it in (0, 9):
            stamp(2 if it == 0 else 3)
        dma = slab_ops(it + 2) if it + 2 < 10 else []
        for r in reads(it, 0):
            e(r)
        if it > 0:
            for k, m in enumerate(mfmas(3)):
                e(m)
                if k in (0, 2) and dma:
                    dma.pop(0)()
        for ks in range(3):
            for r in reads(it, ks + 1):
                e(r)
            e("s_waitcnt lgkmcnt(6)")
            for k, m in enumerate(mfmas(ks)):
                e(m)
                if k in (0, 2) and dma:
                    dma.pop(0)()
        while dma:
            dma.pop(0)()
        if it == 8:
            a.vmop(f"buffer_load_dword v{vTAG}, off, {srd(sDBG)}, 0 sc1", "tag")
            a.vmop(f"buffer_load_dword v{vPOLL}, v{vPA2}, {srd(sWS)}, 0 offen sc1", "tag")
    e("s_waitcnt lgkmcnt(0)")
    for m in mfmas(3):
        e(m)
    a.c("launch tag and w2 flags, requested during slab 8")
    a.wait_vm0()
    e(f"v_readfirstlane_b32 s{sTAG}, v{vTAG}")
    e("s_nop 1")
    e(f"v_cmp_ne_u32 s[{sMSK}:{sMSK+1}], s{sTAG}, v{vPOLL}")
    e(f"s_cmp_eq_u32 s{sTAG}, 0")
    e("s_cbranch_scc1 L_slow_tag")
    e(f"s_cmp_eq_u64 s[{sMSK}:{sMSK+1}], 0")
    e("s_cbranch_scc0 L_slow_f2")
    a.lab("L_p1_ready")
    stamp(4)
    e(f"s_cmp_eq_u32 s{sCT}, 13")
    e(f"s_cselect_b32 s{sT0}, s{sWF}, 0")
    e(f"s_cmp_eq_u32 s{sT0}, 1")
    e("s_cbranch_scc1 L_w2_first")
    a.c("h store bases")
    e(f"s_lshl_b32 s{sT0}, s{sRB}, 3")
    e(f"s_lshl_b32 s{sT1}, s{sWM}, 2")
    e(f"s_add_u32 s{sT0}, s{sT0}, s{sT1}")
    e(f"s_mul_i32 s{sT0}, s{sT0}, 54")
    e(f"s_lshl_b32 s{sT1}, s{sCT}, 2")
    e(f"s_add_u32 s{sT0}, s{sT0}, s{sT1}")
    e(f"s_lshl_b32 s{sT1}, s{sWF}, 1")
    e(f"s_add_u32 s{sT0}, s{sT0}, s{sT1}")
    e(f"s_lshl_b32 s{sT0}, s{sT0}, 10")
    e(f"s_add_u32 s{sHS0}, s{sT0}, {WS_H}")
    e(f"s_add_u32 s{sHS1}, s{sHS0}, {2*54*1024}")
    e("s_nop 1")

    nxt = [0]

    def w2some(n):
        for _ in range(n):
            w2load(nxt[0])
            nxt[0] += 1

    pr = lambda r: f"v[{r}:{r+1}]"
    groups = [(tf, tm, p) for tm in range(2) for tf in range(2) for p in range(2)]
    for gi, (tf, tm, p) in enumerate(groups):
        x0 = acc(tf, tm) + 8 * p
        tt = vGT + 8 * (gi & 1)
        oo = vGO + 4 * (gi & 3)
        P = range(0, 8, 2)
        for i in P:
            e(f"v_pk_mul_f32 {pr(tt+i)}, {pr(x0+i)}, {pr(x0+i)}")
        for i in P:
            e(f"v_pk_fma_f32 {pr(tt+i)}, {pr(tt+i)}, s[{sC1}:{sC1+1}], {pr(vC0)}")
        for i in P:
            e(f"v_pk_mul_f32 {pr(tt+i)}, {pr(tt+i)}, {pr(x0+i)}")
        if gi < o.gw_groups:
            w2some(o.gw_n // 2)
        for i in range(8):
            e(f"v_exp_f32_e32 v{tt+i}, v{tt+i}")
        for i in P:
            e(f"v_pk_add_f32 {pr(tt+i)}, {pr(tt+i)}, 1.0 op_sel_hi:[1,0]")
        if gi < o.gw_groups:
            w2some(o.gw_n - o.gw_n // 2)
        for i in range(8):
            e(f"v_rcp_f32_e32 v{tt+i}, v{tt+i}")
        for i in P:
            e(f"v_pk_mul_f32 {pr(tt+i)}, {pr(tt+i)}, {pr(x0+i)}")
        for i in P:
            e(f"v_cvt_pk_bf16_f32 v{oo+i//2}, v{tt+i}, v{tt+i+1}")
        a.vmop(f"buffer_store_dwordx4 {vr(oo,4)}, v{vHS}, {srd(sWS)}, s{sHS0+tm} offen offset:{tf*1024+p*512} sc1", "hst")
    stamp(5)
    w2some(o.aw_n)
    a.c("flag address: WS_F1 + (2rb + wm)*128 + (2ct + wf)*4")
    e(f"s_lshl_b32 s{sT0}, s{sRB}, 1")
    e(f"s_add_u32 s{sT0}, s{sT0}, s{sWM}")
    e(f"s_lshl_b32 s{sT0}, s{sT0}, 5")
    e(f"s_lshl_b32 s{sT1}, s{sCT}, 1")
    e(f"s_add_u32 s{sT0}, s{sT0}, s{sT1}")
    e(f"s_add_u32 s{sT0}, s{sT0}, s{sWF}")
    e(f"s_lshl_b32 s{sT0}, s{sT0}, 2")
    e(f"s_add_u32 s{sT0}, s{sT0}, {WS_F1}")
    e(f"v_mov_b32 v{vTAG}, s{sTAG}")
    e("s_mov_b64 exec, 1")
    a.wait_vm("hst")
    e(f"buffer_store_dword v{vTAG}, off, {srd(sWS)}, s{sT0} sc1")
    e("s_mov_b64 exec, -1")
    stamp(6)
    nfirst = nxt[0]

    a.lab("L_join")
    a.vm = []
    a.c("b2 offset: (80nt + 4*(lane>>4)) * 2")
    t0, t1, t2, t3, t4, t5 = vT
    e(f"v_lshrrev_b32 v{t0}, 4, v{vLANE}")
    e(f"v_lshlrev_b32 v{t1}, 3, v{t0}")
    e(f"s_mul_i32 s{sT0}, s{sNT}, 160")
    for t in range(5):
        a.vmop(f"buffer_load_dwordx2 {vr(vB2+2*t,2)}, v{t1}, {srd(sB2)}, s{sT0} offen offset:{32*t}", "b2")
    if nfirst % 4:
        e(f"s_add_u32 s{sT3}, s{sWPB}, {(nfirst//4)*4096}")
    for j in range(nfirst, 70):
        w2load(j)
    a.c("h fragment bases per round, partial-sum addresses")
    for rho in range(4):
        e(f"s_add_u32 s{sT0}, s{sWV}, {1+rho}")
        e(f"s_and_b32 s{sT0}, s{sT0}, 3")
        if rho < 3:
            e(f"s_mul_i32 s{sT1}, s{sT0}, 15360")
            e(f"s_add_u32 s{sT1}, s{sT1}, {LDS_PART + rho*5120}")
            e(f"v_add_u32 v{vPW+rho}, s{sT1}, v{vL16}")
        e(f"s_lshl_b32 s{sT1}, s{sRT}, 2")
        e(f"s_add_u32 s{sT0}, s{sT0}, s{sT1}")
        e(f"s_mul_i32 s{sT0}, s{sT0}, 54")
        e(f"s_mul_i32 s{sT1}, s{sWV}, 14")
        e(f"s_add_u32 s{sT0}, s{sT0}, s{sT1}")
        e(f"s_lshl_b32 s{sT0}, s{sT0}, 10")
        for q in range(4):
            e(f"s_add_u32 s{sHB+4*rho+q}, s{sT0}, {WS_H + q*4096}")
    e(f"s_mul_i32 s{sT1}, s{sWV}, 15360")
    e(f"s_add_u32 s{sT1}, s{sT1}, {LDS_PART}")
    e(f"v_add_u32 v{vPR}, s{sT1}, v{vL16}")
    stamp(7)
    spin("L_f1", f"buffer_load_dword v{vPOLL}, v{vPA1}, {srd(sWS)}, 0 offen sc1")
    stamp(8)

    def hload(q):
        rho, j = divmod(q, 14)
        v = vL16B if j >= 12 else vL16
        a.vmop(f"buffer_load_dwordx4 {vr(vH+4*(q%NHB),4)}, v{v}, {srd(sWS)}, s{sHB+4*rho+j//4} offen offset:{(j%4)*1024} sc1", f"h{q}")

    for q in range(NHB):
        hload(q)
    for t in range(5):
        d = vA2[3] + 4 * t
        e(f"v_lshlrev_b32 v{d}, 16, v{vB2+2*t}")
        e(f"v_and_b32 v{d+1}, 0xffff0000, v{vB2+2*t}")
        e(f"v_lshlrev_b32 v{d+2}, 16, v{vB2+2*t+1}")
        e(f"v_and_b32 v{d+3}, 0xffff0000, v{vB2+2*t+1}")
    a.c("output transpose addresses")
    vTW, vTR, vOA = vB2, vB2 + 1, vB2 + 4
    e(f"v_and_b32 v{t1}, 15, v{vLANE}")
    e(f"v_mul_u32_u24 v{t1}, 176, v{t1}")
    e(f"v_lshl_add_u32 v{t1}, v{t0}, 3, v{t1}")
    e(f"s_lshl_b32 s{sT0}, s{sWV}, 12")
    e(f"v_add_u32 v{vTW}, s{sT0}, v{t1}")
    for i in range(3):
        e(f"v_add_u32 v{t1}, {64*i}, v{vLANE}")
        e(f"v_mul_u32_u24 v{t2}, 205, v{t1}")
        e(f"v_lshrrev_b32 v{t2}, 11, v{t2}")
        e(f"v_mul_u32_u24 v{t3}, 10, v{t2}")
        e(f"v_sub_u32 v{t3}, v{t1}, v{t3}")
        e(f"v_lshlrev_b32 v{t3}, 4, v{t3}")
        e(f"v_mul_u32_u24 v{t4}, 176, v{t2}")
        e(f"v_add3_u32 v{vTR+i}, v{t4}, v{t3}, s{sT0}")
        e(f"v_mul_u32_u24 v{t4}, 1280, v{t2}")
        e(f"v_add_u32 v{vOA+i}, v{t4}, v{t3}")
    e(f"v_mov_b32 v{t4}, {OOB}")
    e(f"v_cmp_gt_u32 vcc, 32, v{vLANE}")
    e(f"s_lshl_b32 s{sT1}, s{sRT}, 2")
    e(f"s_add_u32 s{sT1}, s{sT1}, s{sWV}")
    e(f"v_cndmask_b32 v{vOA+2}, v{t4}, v{vOA+2}, vcc")
    e(f"s_mul_i32 s{sT1}, s{sT1}, {16*1280}")
    e(f"s_mul_i32 s{sT2}, s{sNT}, 160")
    e(f"s_add_u32 s{sHS0}, s{sT1}, s{sT2}")

    pend = []
    for q in range(56):
        rho, j = divmod(q, 14)
        a.wait_vm(f"h{q}")
        if q == 0:
            stamp(9)
        for t in range(5):
            d = vr(vA2[rho] + 4 * t, 4)
            c = "0" if (j == 0 and rho < 3) else d
            e(f"v_mfma_f32_16x16x32_bf16 {d}, {w2reg(5*j+t)}, {vr(vH+4*(q%NHB),4)}, {c}")
            if t == 2 and pend:
                e(pend.pop(0))
        if q + NHB < 56:
            hload(q + NHB)
        if j == 1 and rho >= 1:
            pend += [f"ds_write_b128 v{vPW+rho-1}, {vr(vA2[rho-1]+4*t,4)} offset:{t*1024}" for t in range(5)]
        if rho == 3 and j == 7:
            e("s_waitcnt lgkmcnt(0)")
            e("s_barrier")
            for r2 in range(3):
                for t in range(5):
                    e(f"ds_read_b128 {vr(vA2[r2]+4*t,4)}, v{vPR} offset:{r2*5120+t*1024}")
        if rho == 3 and j == 10:
            e("s_waitcnt lgkmcnt(0)")
            pend += [f"v_pk_add_f32 {pr(vA2[0]+i)}, {pr(vA2[0]+i)}, {pr(vA2[1]+i)}" for i in range(0, 20, 2)]
            pend += [f"v_pk_add_f32 {pr(vA2[0]+i)}, {pr(vA2[0]+i)}, {pr(vA2[2]+i)}" for i in range(0, 20, 2)]
        if rho == 3 and j >= 10:
            for _ in range(6):
                if pend:
                    e(pend.pop(0))
    while pend:
        e(pend.pop(0))
    stamp(10)
    e("s_nop 7")
    for i in range(0, 20, 2):
        e(f"v_pk_add_f32 {pr(vA2[0]+i)}, {pr(vA2[0]+i)}, {pr(vA2[3]+i)}")
    for i in range(10):
        e(f"v_cvt_pk_bf16_f32 v{vA2[1]+i}, v{vA2[0]+2*i}, v{vA2[0]+2*i+1}")
    for t in range(5):
        e(f"ds_write_b64 v{vTW}, {vr(vA2[1]+2*t,2)} offset:{32*t}")
    e("s_waitcnt lgkmcnt(0)")
    for i in range(3):
        e(f"ds_read_b128 {vr(vA2[2]+4*i,4)}, v{vTR+i}")
    for i in range(3):
        e(f"s_waitcnt lgkmcnt({2-i})")
        e(f"buffer_store_dwordx4 {vr(vA2[2]+4*i,4)}, v{vOA+i}, {srd(sOUT)}, s{sHS0} offen")
    if o.stamps:
        stamp(11)
        e("s_waitcnt vmcnt(0)")
        stamp(12)
        e(f"s_memrealtime s[{sST}:{sST+1}]")
        e("s_waitcnt lgkmcnt(0)")
        e(f"v_writelane_b32 v{vSTA}, s{sST}, 13")
        e(f"s_lshl_b32 s{sT0}, s2, 2")
        e(f"s_add_u32 s{sT0}, s{sT0}, s{sWV}")
        e(f"s_lshl_b32 s{sT0}, s{sT0}, 8")
        e(f"s_add_u32 s{sT0}, s{sT0}, {WS_STAMP}")
        e(f"v_lshlrev_b32 v{t1}, 2, v{vLANE}")
        e(f"buffer_store_dword v{vSTA}, v{t1}, {srd(sWS)}, s{sT0} offen")
    a.lab("L_end")
    e("s_endpgm")

    a.lab("L_slow_tag")
    spin_tag("L_st")
    a.lab("L_slow_f2")
    spin("L_sf", f"buffer_load_dword v{vPOLL}, v{vPA2}, {srd(sWS)}, 0 offen sc1")
    e("s_branch L_p1_ready")

    a.lab("L_helper")
    t0, t1, t2, t3, t4, t5 = vT
    sH = sRB
    e(f"s_lshl_b32 s{sH}, s{sJ}, 2")
    e(f"s_add_u32 s{sH}, s{sH}, s{sI}")
    e(f"s_sub_u32 s{sH}, s{sH}, 28")
    if o.codepf:
        e(f"s_getpc_b64 s[{sCODE}:{sCODE+1}]")
        a.lab("L_pc")
        e(f"s_sub_u32 s{sCODE}, s{sCODE}, L_pc-{KNAME}")
        e(f"s_subb_u32 s{sCODE+1}, s{sCODE+1}, 0")
        e(f"s_mov_b32 s{sCODE+2}, L_code_end-{KNAME}")
        e(f"s_mov_b32 s{sCODE+3}, 0x20000")
        e(f"v_lshlrev_b32 v{t0}, 7, v0")
        e(f"buffer_load_dword v{vPOLL}, v{t0}, {srd(sCODE)}, 0 offen")
    e("s_waitcnt lgkmcnt(0)")
    if o.stamps:
        e(f"v_writelane_b32 v{vSTA}, s{sST}, 0")
    mk_srd(sWS, sKA + 14, WS_SIZE)
    mk_srd(sDBG, sKA + 12, 256)
    mk_srd(sOUT, sKA + 10, M * D * 2)
    mk_srd(sB2, sKA + 8, D * 2)
    e(f"s_cmp_eq_u32 s{sH}, 31")
    e("s_cbranch_scc0 L_notpub")
    e(f"s_cmp_eq_u32 s{sWV}, 0")
    e("s_cbranch_scc0 L_notpub")
    a.c("publish this launch's tag: previous tag advanced by an odd constant, never zero")
    e(f"buffer_load_dword v{vTAG}, off, {srd(sWS)}, 0 offset:{WS_EPOCH} sc1")
    e("s_waitcnt vmcnt(0)")
    e(f"v_add_u32 v{vTAG}, 0x9e3779b9, v{vTAG}")
    e(f"v_mov_b32 v{t0}, 0x9e3779b9")
    e(f"v_cmp_eq_u32 vcc, 0, v{vTAG}")
    e("s_nop 1")
    e(f"v_cndmask_b32 v{vTAG}, v{vTAG}, v{t0}, vcc")
    e("s_mov_b64 exec, 1")
    e(f"buffer_store_dword v{vTAG}, off, {srd(sDBG)}, 0 sc1")
    e(f"buffer_store_dword v{vTAG}, off, {srd(sWS)}, 0 offset:{WS_EPOCH} sc1")
    e("s_mov_b64 exec, -1")
    a.lab("L_notpub")
    e(f"s_cmp_ge_u32 s{sH}, 27")
    e("s_cbranch_scc1 L_noconv")
    mk_srd(sW2, sKA + 6, F * D * 2)
    sS = sCT
    e(f"s_lshl_b32 s{sS}, s{sH}, 1")
    e(f"s_add_u32 s{sS}, s{sS}, s{sWM}")
    e(f"v_lshrrev_b32 v{t0}, 3, v{vLANE}")
    e(f"v_mul_u32_u24 v{t0}, 1280, v{t0}")
    e(f"v_and_b32 v{t1}, 7, v{vLANE}")
    e(f"v_lshrrev_b32 v{t2}, 4, v{vLANE}")
    e(f"v_lshlrev_b32 v{t3}, 1, v{t2}")
    e(f"v_xor_b32 v{t1}, v{t1}, v{t3}")
    e(f"v_lshl_add_u32 v{vXD}, v{t1}, 4, v{t0}")
    for n in range(1, 4):
        e(f"v_add_u32 v{vXD+n}, {n*(10240-1024)}, v{vXD}")
    e(f"s_mul_i32 s{sXO}, s{sS}, {32*1280}")
    e(f"s_mul_i32 s{sT0}, s{sWF}, 640")
    e(f"s_add_u32 s{sXO}, s{sXO}, s{sT0}")
    e(f"s_mul_i32 s{sMX}, s{sWV}, 20480")
    a.vm = []
    for cb in range(5):
        e(f"s_add_u32 m0, s{sMX}, {cb*4096}")
        e(f"s_add_u32 s{sT0}, s{sXO}, {cb*128}")
        for n in range(4):
            a.vmop(f"buffer_load_dwordx4 v{vXD+n}, {srd(sW2)}, s{sT0} offen offset:{n*1024} lds", f"c{cb}")
    a.c("transpose-read addresses: row = 16P + 4hf + (i>>2), key = (2hf + (i>>3)) & 3")
    e(f"v_lshrrev_b32 v{t0}, 5, v{vLANE}")
    e(f"v_bfe_u32 v{t1}, v{vLANE}, 4, 1")
    e(f"v_bfe_u32 v{t2}, v{vLANE}, 2, 2")
    e(f"v_lshl_add_u32 v{t2}, v{t1}, 2, v{t2}")
    e(f"v_lshl_add_u32 v{t2}, v{t0}, 4, v{t2}")
    e(f"v_bfe_u32 v{t3}, v{t2}, 1, 2")
    e(f"v_and_b32 v{t4}, 3, v{vLANE}")
    e(f"v_lshlrev_b32 v{t4}, 3, v{t4}")
    e(f"v_lshl_add_u32 v{t2}, v{t2}, 7, v{t4}")
    e(f"v_add_u32 v{t2}, s{sMX}, v{t2}")
    for u in range(4):
        e(f"v_xor_b32 v{t4}, {u}, v{t3}")
        e(f"v_lshl_add_u32 v{vXR+u}, v{t4}, 5, v{t2}")
    e(f"s_mul_i32 s{sT1}, s{sWF}, {4*54}")
    e(f"s_add_u32 s{sT1}, s{sT1}, s{sS}")
    e(f"s_mul_i32 s{sT1}, s{sT1}, 5120")
    e(f"s_add_u32 s{sT1}, s{sT1}, {WS_WP}")
    for cb in range(5):
        a.wait_vm(f"c{cb}")
        for u in range(4):
            for h in range(2):
                e(f"ds_read_b64_tr_b16 {vr(vACC+16*cb+4*u+2*h,2)}, v{vXR+u} offset:{cb*4096+h*1024}")
        e("s_waitcnt lgkmcnt(0)")
        for u in range(4):
            ntl, t = divmod(4 * cb + u, 5)
            e(f"s_add_u32 s{sT0}, s{sT1}, {ntl*54*5120 + t*1024}")
            a.vmop(f"buffer_store_dwordx4 {vr(vACC+16*cb+4*u,4)}, v{vL16}, {srd(sWS)}, s{sT0} offen sc1", "cst")
    stamp(1)
    spin_tag("L_ht")
    e(f"s_lshl_b32 s{sT0}, s{sWF}, 6")
    e(f"s_add_u32 s{sT0}, s{sT0}, s{sS}")
    e(f"s_lshl_b32 s{sT0}, s{sT0}, 2")
    e(f"s_add_u32 s{sT0}, s{sT0}, {WS_F2}")
    e("s_mov_b64 exec, 1")
    e(f"buffer_store_dword v{vTAG}, off, {srd(sWS)}, s{sT0} sc1")
    e("s_mov_b64 exec, -1")
    stamp(2)
    a.lab("L_noconv")
    spin_tag("L_ht2")
    spin("L_hf", f"buffer_load_dword v{vPOLL}, v{vPA2}, {srd(sWS)}, 0 offen sc1")
    stamp(4)
    a.lab("L_w2_first")
    for j in range(nfirst):
        w2load(j)
    e("s_branch L_join")
    a.lab("L_code_end")

    head = [
        "; Fused MLP: out = gelu_tanh(x @ w1 + b1) @ w2 + b2, bf16, x 2048x640, w1 640x1728, w2 1728x640.",
        "; kernarg: 0 x, 8 w1, 16 b1, 24 w2, 32 b2, 40 out, 48 debug (zeroed), 56 workspace",
        f"; @launch grid=(256,1,1) block=(256,1,1) lds={LDS_BYTES}",
        '.amdgcn_target "amdgcn-amd-amdhsa--gfx950"',
        ".text",
        f".globl {KNAME}",
        ".p2align 8",
        f".type {KNAME},@function",
    ]
    tail = [
        '.section .rodata,"a"',
        ".p2align 6",
        f".amdhsa_kernel {KNAME}",
        "  .amdhsa_next_free_vgpr 512",
        "  .amdhsa_next_free_sgpr 102",
        "  .amdhsa_accum_offset 256",
        "  .amdhsa_group_segment_fixed_size 0",
        "  .amdhsa_kernarg_size 64",
        "  .amdhsa_user_sgpr_count 2",
        "  .amdhsa_user_sgpr_kernarg_segment_ptr 1",
        "  .amdhsa_system_sgpr_workgroup_id_x 1",
        ".end_amdhsa_kernel",
    ]
    return "\n".join(head + a.l + tail) + "\n"


if __name__ == "__main__":
    ap = argparse.ArgumentParser()
    ap.add_argument("-o", default="standalone__dense_activation_gelu__prompt.s")
    ap.add_argument("--stamps", type=int, default=0)
    ap.add_argument("--rot", type=int, default=0)
    ap.add_argument("--gw_groups", type=int, default=6)
    ap.add_argument("--gw_n", type=int, default=3)
    ap.add_argument("--aw_n", type=int, default=6)
    ap.add_argument("--codepf", type=int, default=1)
    o = ap.parse_args()
    open(o.o, "w").write(build(o))
```

```python
import argparse

KNAME = "standalone__dense_activation_gelu__prompt_kernel"
M, D, F = 2048, 640, 1728
WS_EPOCH = 0
WS_F1 = 4096
WS_F2 = 8192
WS_STAMP = 12 << 20
WS_WP = 1 << 20
WS_H = 4 << 20
WS_SIZE = 16 << 20
OOB = 0x40000000
SPIN_MAX = 400000

LDS_X = 0
LDS_W = 49152
LDS_PART = 98304
LDS_TR = 0
LDS_BYTES = 163840

sX, sW1, sWS, sOUT, sW2, sB1, sB2, sDBG = 8, 12, 16, 20, 24, 28, 32, 36
sKA = 40
sWV, sJ, sI = 3, 4, 5
sRB, sCT, sRT, sNT = 56, 57, 58, 59
sTAG = 60
sXO, sWO, sSL = 61, 62, 63
sT0, sT1, sT2, sT3 = 64, 65, 66, 67
sMX, sMW = 68, 69
sHB = 70
sC1 = 86
sWPB = 88
sSPIN = 89
sMSK = 90
sST = 92
sWM, sWF = 94, 95
sHS0, sHS1 = 96, 97
sCODE = 24

vLANE = 1
vT = [2, 3, 4, 5, 6, 7]
vC0 = 8
vL16 = 10
vL16B = 11
vPOLL, vPA1, vPA2 = 12, 13, 14
vTAG = 15
vXD, vWD = 16, 20
vXR, vWR = 24, 28
vHS = 30
vSTA = 31
vFA, vFB = 36, 52
vACC = 68
vGT = 132
vGO = 164
vH = 132
vA2 = [36, 56, 76, 196]
vB2 = 216
vPW = 226
vPR = 229
vW2V = 232
NHB = 16


class Asm:
    def __init__(self):
        self.l = []
        self.vm = []
        self.nst = 0

    def e(self, s):
        self.l.append("    " + s)

    def lab(self, s):
        self.l.append(s + ":")

    def c(self, s):
        self.l.append("    ; " + s)

    def vmop(self, s, tag):
        self.e(s)
        self.vm.append(tag)

    def vmn(self, tag):
        idx = max(i for i, t in enumerate(self.vm) if t == tag)
        n = len(self.vm) - idx - 1
        self.vm = self.vm[idx + 1:]
        return min(n, 63)

    def wait_vm(self, tag, extra=""):
        self.e(f"s_waitcnt vmcnt({self.vmn(tag)}){extra}")

    def wait_vm0(self):
        self.vm = []
        self.e("s_waitcnt vmcnt(0)")


def vr(a, n):
    return f"v[{a}:{a+n-1}]"


def srd(r):
    return f"s[{r}:{r+3}]"


def w2reg(j):
    return f"a[{4*j}:{4*j+3}]" if j < 64 else vr(vW2V + 4 * (j - 64), 4)


def build(o):
    a = Asm()
    e = a.e

    def stamp(k):
        if o.amp == k:
            e("s_memrealtime s[100:101]")
            e("s_waitcnt lgkmcnt(0)")
        if not o.stamps:
            return
        e(f"s_memtime s[{sST}:{sST+1}]")
        e("s_waitcnt lgkmcnt(0)")
        e(f"v_writelane_b32 v{vSTA}, s{sST}, {k}")

    def mk_srd(r, p, n):
        e(f"s_mov_b32 s{r}, s{p}")
        e(f"s_mov_b32 s{r+1}, s{p+1}")
        e(f"s_mov_b32 s{r+2}, {n}")
        e(f"s_mov_b32 s{r+3}, 0x20000")

    def spin(label, load, cmp_ne_tag=True):
        e(f"s_mov_b32 s{sSPIN}, 0")
        a.lab(label)
        e(load)
        e("s_waitcnt vmcnt(0)")
        e(f"v_cmp_ne_u32 s[{sMSK}:{sMSK+1}], s{sTAG}, v{vPOLL}")
        e(f"s_add_u32 s{sSPIN}, s{sSPIN}, 1")
        e(f"s_cmp_eq_u64 s[{sMSK}:{sMSK+1}], 0")
        e(f"s_cbranch_scc1 {label}_ok")
        e(f"s_cmp_lt_u32 s{sSPIN}, {SPIN_MAX}")
        e(f"s_cbranch_scc1 {label}")
        a.lab(label + "_ok")
        a.vm = []

    def spin_tag(label):
        e(f"s_mov_b32 s{sSPIN}, 0")
        a.lab(label)
        e(f"buffer_load_dword v{vTAG}, off, {srd(sDBG)}, 0 sc1")
        e("s_waitcnt vmcnt(0)")
        e(f"v_readfirstlane_b32 s{sTAG}, v{vTAG}")
        e(f"s_add_u32 s{sSPIN}, s{sSPIN}, 1")
        e(f"s_cmp_lg_u32 s{sTAG}, 0")
        e(f"s_cbranch_scc1 {label}_ok")
        e(f"s_cmp_lt_u32 s{sSPIN}, {SPIN_MAX}")
        e(f"s_cbranch_scc1 {label}")
        a.lab(label + "_ok")
        a.vm = []

    def w2load(j):
        if j % 4 == 0:
            e(f"s_add_u32 s{sT3}, s{sWPB}, {j*1024}")
        v = vL16B if j >= 60 else vL16
        a.vmop(f"buffer_load_dwordx4 {w2reg(j)}, v{v}, {srd(sWS)}, s{sT3} offen offset:{(j%4)*1024} sc1", "w2")

    a.lab(KNAME)
    if o.stamps:
        e(f"s_memtime s[{sST}:{sST+1}]")
        e("s_memrealtime s[98:99]")
    if o.amp:
        e("s_memrealtime s[98:99]")
    e("s_cmp_ge_u32 s2, 256")
    e("s_cbranch_scc1 L_end")
    e(f"s_load_dwordx16 s[{sKA}:{sKA+15}], s[0:1], 0")
    e(f"v_lshrrev_b32 v{vT[0]}, 6, v0")
    e(f"v_and_b32 v{vLANE}, 63, v0")
    e(f"v_readfirstlane_b32 s{sWV}, v{vT[0]}")
    e(f"s_and_b32 s{sJ}, s2, 7")
    e(f"s_lshr_b32 s{sI}, s2, 3")
    e(f"v_lshlrev_b32 v{vL16}, 4, v{vLANE}")
    a.c("phase-2 tile: rt = 8*(j>>1) + (i>>2), nt = 4*(j&1) + (i&3)")
    e(f"s_lshr_b32 s{sT0}, s{sJ}, 1")
    e(f"s_lshl_b32 s{sRT}, s{sT0}, 3")
    e(f"s_lshr_b32 s{sT1}, s{sI}, 2")
    e(f"s_add_u32 s{sRT}, s{sRT}, s{sT1}")
    e(f"s_and_b32 s{sT1}, s{sJ}, 1")
    e(f"s_lshl_b32 s{sNT}, s{sT1}, 2")
    e(f"s_and_b32 s{sT2}, s{sI}, 3")
    e(f"s_add_u32 s{sNT}, s{sNT}, s{sT2}")
    a.c("phase-1 tile: rb = 4*(j>>1) + i/7, ct = 7*(j&1) + i%7")
    e(f"s_mul_i32 s{sT2}, s{sI}, 37")
    e(f"s_lshr_b32 s{sT2}, s{sT2}, 8")
    e(f"s_mul_i32 s{sT3}, s{sT2}, 7")
    e(f"s_sub_u32 s{sT3}, s{sI}, s{sT3}")
    e(f"s_lshl_b32 s{sRB}, s{sT0}, 2")
    e(f"s_add_u32 s{sRB}, s{sRB}, s{sT2}")
    e(f"s_mul_i32 s{sCT}, s{sT1}, 7")
    e(f"s_add_u32 s{sCT}, s{sCT}, s{sT3}")
    if o.rot == 0:
        e(f"s_mov_b32 s{sSL}, 0")
    elif o.rot == 2:
        e(f"s_add_u32 s{sSL}, s{sT2}, s{sT3}")
        e(f"s_and_b32 s{sSL}, s{sSL}, 1")
        e(f"s_mul_i32 s{sSL}, s{sSL}, 5")
    elif o.rot == 4:
        e(f"s_add_u32 s{sSL}, s{sT2}, s{sT3}")
        e(f"s_and_b32 s{sSL}, s{sSL}, 3")
        e(f"s_mul_i32 s{sSL}, s{sSL}, 5")
        e(f"s_lshr_b32 s{sSL}, s{sSL}, 1")
    e(f"s_lshr_b32 s{sWM}, s{sWV}, 1")
    e(f"s_and_b32 s{sWF}, s{sWV}, 1")
    e(f"s_cmp_eq_u32 s{sWV}, 3")
    e(f"s_cselect_b32 s{sT0}, {OOB}, 0")
    e(f"v_or_b32 v{vL16B}, s{sT0}, v{vL16}")
    a.c("packed-w2 base of this wave and polling addresses")
    e(f"s_mul_i32 s{sWPB}, s{sNT}, 54")
    e(f"s_mul_i32 s{sT0}, s{sWV}, 14")
    e(f"s_add_u32 s{sWPB}, s{sWPB}, s{sT0}")
    e(f"s_mul_i32 s{sWPB}, s{sWPB}, 5120")
    e(f"s_add_u32 s{sWPB}, s{sWPB}, {WS_WP}")
    e(f"v_min_u32 v{vPA2}, 13, v{vLANE}")
    e(f"v_add_u32 v{vPA2}, s{sT0}, v{vPA2}")
    e(f"v_min_u32 v{vPA2}, 53, v{vPA2}")
    e(f"s_lshr_b32 s{sT1}, s{sNT}, 2")
    e(f"s_lshl_b32 s{sT1}, s{sT1}, 8")
    e(f"s_add_u32 s{sT1}, s{sT1}, {WS_F2}")
    e(f"v_lshl_add_u32 v{vPA2}, v{vPA2}, 2, s{sT1}")
    e(f"s_mul_i32 s{sT0}, s{sWV}, 7")
    e(f"v_min_u32 v{vPA1}, 6, v{vLANE}")
    e(f"v_add_u32 v{vPA1}, s{sT0}, v{vPA1}")
    e(f"v_min_u32 v{vPA1}, 26, v{vPA1}")
    e(f"s_lshl_b32 s{sT1}, s{sRT}, 7")
    e(f"s_add_u32 s{sT1}, s{sT1}, {WS_F1}")
    e(f"v_lshl_add_u32 v{vPA1}, v{vPA1}, 2, s{sT1}")
    if o.stamps:
        e(f"v_mov_b32 v{vSTA}, 0")
    e(f"s_cmp_ge_u32 s{sI}, 28")
    e("s_cbranch_scc1 L_helper")

    a.c("x staging offsets: row = 8n + (lane>>3), chunk = (lane&7) ^ ((4n + (lane>>4)) & 7)")
    t0, t1, t2, t3, t4, t5 = vT
    e(f"v_lshrrev_b32 v{t0}, 3, v{vLANE}")
    e(f"v_mul_u32_u24 v{t0}, 1280, v{t0}")
    e(f"v_and_b32 v{t1}, 7, v{vLANE}")
    e(f"v_lshrrev_b32 v{t2}, 4, v{vLANE}")
    e(f"v_xor_b32 v{t1}, v{t1}, v{t2}")
    e(f"v_xor_b32 v{t3}, 4, v{t1}")
    e(f"v_lshl_add_u32 v{vXD}, v{t1}, 4, v{t0}")
    e(f"v_lshl_add_u32 v{vXD+1}, v{t3}, 4, v{t0}")
    e(f"v_add_u32 v{vXD+2}, {2*(10240-1024)}, v{vXD}")
    e(f"v_add_u32 v{vXD+3}, {3*(10240-1024)}, v{vXD+1}")
    e(f"v_add_u32 v{vXD+1}, {10240-1024}, v{vXD+1}")
    a.c("w1 staging offsets: row = 4n + (lane>>4), chunk = (lane&15) ^ ((lane>>4) << 2)")
    e(f"v_mul_u32_u24 v{t0}, 3456, v{t2}")
    e(f"v_and_b32 v{t1}, 15, v{vLANE}")
    e(f"v_lshlrev_b32 v{t3}, 2, v{t2}")
    e(f"v_xor_b32 v{t1}, v{t1}, v{t3}")
    e(f"v_lshl_add_u32 v{vWD}, v{t1}, 4, v{t0}")
    e(f"s_cmp_eq_u32 s{sCT}, 13")
    e(f"s_cselect_b32 s{sT0}, 8, 16")
    e(f"v_mov_b32 v{t3}, {OOB}")
    e(f"v_cmp_gt_u32 vcc, s{sT0}, v{t1}")
    e(f"s_mul_i32 s{sXO}, s{sRB}, {128*1280}")
    e(f"s_mul_i32 s{sT1}, s{sWV}, {32*1280}")
    e(f"v_cndmask_b32 v{vWD}, v{t3}, v{vWD}, vcc")
    for n in range(1, 4):
        e(f"v_add_u32 v{vWD+n}, {n*(4*3456-1024)}, v{vWD}")
    e(f"s_add_u32 s{sXO}, s{sXO}, s{sT1}")
    e(f"s_lshl_b32 s{sT1}, s{sSL}, 7")
    e(f"s_add_u32 s{sXO}, s{sXO}, s{sT1}")
    e(f"s_lshl_b32 s{sWO}, s{sCT}, 8")
    e(f"s_mul_i32 s{sT1}, s{sWV}, {16*3456}")
    e(f"s_add_u32 s{sWO}, s{sWO}, s{sT1}")
    e(f"s_mul_i32 s{sT1}, s{sSL}, {64*3456}")
    e(f"s_add_u32 s{sWO}, s{sWO}, s{sT1}")
    e(f"s_lshl_b32 s{sMX}, s{sWV}, 12")
    e(f"s_add_u32 s{sMW}, s{sMX}, {LDS_W}")
    a.c("b1 offset: (128ct + 64wf + 4*(lane>>5)) * 2")
    e(f"v_lshrrev_b32 v{t4}, 5, v{vLANE}")
    e(f"v_lshlrev_b32 v{t5}, 3, v{t4}")
    e(f"s_lshl_b32 s{sT1}, s{sCT}, 8")
    e(f"s_lshl_b32 s{sT2}, s{sWF}, 7")
    e(f"s_add_u32 s{sT2}, s{sT1}, s{sT2}")
    e("s_waitcnt lgkmcnt(0)")
    if o.stamps:
        e(f"v_writelane_b32 v{vSTA}, s{sST}, 0")
    mk_srd(sB1, sKA + 4, F * 2)
    mk_srd(sX, sKA + 0, M * D * 2)
    mk_srd(sW1, sKA + 2, D * F * 2)
    for q in range(8):
        a.vmop(f"buffer_load_dwordx2 {vr(vGT+2*q, 2)}, v{t5}, {srd(sB1)}, s{sT2} offen offset:{16*q}", "b1")

    def slab_ops(s):
        slot = s % 3
        ops = []

        def mx():
            e(f"s_add_u32 m0, s{sMX}, {slot*16384}")

        def mw():
            e(f"s_add_u32 m0, s{sMW}, {slot*16384}")

        def ld(n, isx):
            def f():
                if n == 0:
                    (mx if isx else mw)()
                    e("s_nop 0")
                if isx:
                    a.vmop(f"buffer_load_dwordx4 v{vXD+n}, {srd(sX)}, s{sXO} offen offset:{n*1024} lds", f"s{s}")
                else:
                    a.vmop(f"buffer_load_dwordx4 v{vWD+n}, {srd(sW1)}, s{sWO} offen offset:{n*1024} lds", f"s{s}")
                if n == 3 and not isx and s < 9:
                    if o.rot:
                        e(f"s_add_u32 s{sSL}, s{sSL}, 1")
                        e(f"s_cmp_eq_u32 s{sSL}, 10")
                        e(f"s_cselect_b32 s{sT0}, -9, 1")
                        e(f"s_cselect_b32 s{sT1}, s{sHS0}, s{sHS1}")
                        e(f"s_lshl_b32 s{sT0}, s{sT0}, 7")
                        e(f"s_add_u32 s{sWO}, s{sWO}, s{sT1}")
                        e(f"s_add_u32 s{sXO}, s{sXO}, s{sT0}")
                    else:
                        e(f"s_add_u32 s{sXO}, s{sXO}, 128")
                        e(f"s_add_u32 s{sWO}, s{sWO}, {64*3456}")
            return f
        for n in range(4):
            ops.append(ld(n, True))
        for n in range(4):
            ops.append(ld(n, False))
        return ops

    if o.rot:
        e(f"s_mov_b32 s{sHS0}, {-9*64*3456 & 0xffffffff}")
        e(f"s_mov_b32 s{sHS1}, {64*3456}")
    for s in range(2):
        for f in slab_ops(s):
            f()
    stamp(1)
    mk_srd(sWS, sKA + 14, WS_SIZE)
    mk_srd(sDBG, sKA + 12, 256)
    mk_srd(sOUT, sKA + 10, M * D * 2)
    mk_srd(sB2, sKA + 8, D * 2)
    a.c("fragment read addresses")
    e(f"v_and_b32 v{t0}, 31, v{vLANE}")
    e(f"s_lshl_b32 s{sT0}, s{sWM}, 13")
    e(f"v_lshl_add_u32 v{t1}, v{t0}, 7, s{sT0}")
    e(f"v_bfe_u32 v{t0}, v{vLANE}, 1, 3")
    e(f"v_xor_b32 v{t0}, v{t0}, v{t4}")
    for ks in range(4):
        e(f"v_xor_b32 v{t2}, {2*ks}, v{t0}")
        e(f"v_lshl_add_u32 v{vXR+ks}, v{t2}, 4, v{t1}")
    e(f"v_bfe_u32 v{t0}, v{vLANE}, 2, 2")
    e(f"v_lshl_add_u32 v{t1}, v{t4}, 3, v{t0}")
    e(f"v_lshlrev_b32 v{t1}, 8, v{t1}")
    e(f"s_lshl_b32 s{sT0}, s{sWF}, 1")
    e(f"v_xor_b32 v{t0}, s{sT0}, v{t0}")
    e(f"v_lshl_add_u32 v{t1}, v{t0}, 6, v{t1}")
    e(f"v_bfe_u32 v{t0}, v{vLANE}, 4, 1")
    e(f"v_lshl_add_u32 v{t1}, v{t0}, 5, v{t1}")
    e(f"v_and_b32 v{t2}, 3, v{vLANE}")
    e(f"v_lshl_add_u32 v{t1}, v{t2}, 3, v{t1}")
    e(f"v_add_u32 v{vWR}, {LDS_W}, v{t1}")
    e(f"v_xor_b32 v{vWR+1}, 64, v{vWR}")
    a.c("h store offset: ((lane>>4)&1)*54 KiB + (lane>>5)*256 + (lane&15)*16")
    e(f"v_mul_u32_u24 v{vHS}, {54*1024}, v{t0}")
    e(f"v_lshl_add_u32 v{vHS}, v{t4}, 8, v{vHS}")
    e(f"v_and_b32 v{t2}, 15, v{vLANE}")
    e(f"v_lshl_add_u32 v{vHS}, v{t2}, 4, v{vHS}")
    e(f"v_mov_b32 v{vC0}, 0xc0135761")
    e(f"v_mov_b32 v{vC0+1}, 0xc0135761")
    e(f"s_mov_b32 s{sC1}, 0xbdd2d3e8")
    e(f"s_mov_b32 s{sC1+1}, 0xbdd2d3e8")
    a.c("accumulators start from b1")
    a.wait_vm("b1")
    acc = lambda tf, tm: vACC + 16 * (2 * tm + tf)
    for tf in range(2):
        for q in range(4):
            src = vGT + 2 * (4 * tf + q)
            d = acc(tf, 0) + 4 * q
            e(f"v_lshlrev_b32 v{d}, 16, v{src}")
            e(f"v_and_b32 v{d+1}, 0xffff0000, v{src}")
            e(f"v_lshlrev_b32 v{d+2}, 16, v{src+1}")
            e(f"v_and_b32 v{d+3}, 0xffff0000, v{src+1}")
    for tf in range(2):
        for r in range(16):
            e(f"v_mov_b32 v{acc(tf,1)+r}, v{acc(tf,0)+r}")

    fa = lambda b, t: vFA + 8 * b + 4 * t
    fb = lambda b, t: vFB + 8 * b + 4 * t

    def reads(s, ks):
        b = ks & 1
        slot = s % 3
        r = []
        for t in range(2):
            r.append(f"ds_read_b128 {vr(fb(b,t),4)}, v{vXR+ks} offset:{slot*16384 + t*4096}")
            for h in range(2):
                r.append(f"ds_read_b64_tr_b16 {vr(fa(b,t)+2*h,2)}, v{vWR+t} offset:{slot*16384 + ks*4096 + h*1024}")
        return r

    def mfmas(ks):
        b = ks & 1
        return [f"v_mfma_f32_32x32x16_bf16 {vr(acc(tf,tm),16)}, {vr(fa(b,tf),4)}, {vr(fb(b,tm),4)}, {vr(acc(tf,tm),16)}"
                for tm in range(2) for tf in range(2)]

    for it in range(10):
        a.c(f"slab {it}")
        a.wait_vm(f"s{it}", " lgkmcnt(0)")
        e("s_barrier")
        if it in (0, 9):
            stamp(2 if it == 0 else 3)
        dma = slab_ops(it + 2) if it + 2 < 10 else []
        for r in reads(it, 0):
            e(r)
        if it > 0:
            for k, m in enumerate(mfmas(3)):
                e(m)
                if k in (0, 2) and dma:
                    dma.pop(0)()
        for ks in range(3):
            for r in reads(it, ks + 1):
                e(r)
            e("s_waitcnt lgkmcnt(6)")
            for k, m in enumerate(mfmas(ks)):
                e(m)
                if k in (0, 2) and dma:
                    dma.pop(0)()
        while dma:
            dma.pop(0)()
        if it == 8:
            a.vmop(f"buffer_load_dword v{vTAG}, off, {srd(sDBG)}, 0 sc1", "tag")
            a.vmop(f"buffer_load_dword v{vPOLL}, v{vPA2}, {srd(sWS)}, 0 offen sc1", "tag")
    e("s_waitcnt lgkmcnt(0)")
    for m in mfmas(3):
        e(m)
    a.c("launch tag and w2 flags, requested during slab 8")
    a.wait_vm0()
    e(f"v_readfirstlane_b32 s{sTAG}, v{vTAG}")
    e("s_nop 1")
    e(f"v_cmp_ne_u32 s[{sMSK}:{sMSK+1}], s{sTAG}, v{vPOLL}")
    e(f"s_cmp_eq_u32 s{sTAG}, 0")
    e("s_cbranch_scc1 L_slow_tag")
    e(f"s_cmp_eq_u64 s[{sMSK}:{sMSK+1}], 0")
    e("s_cbranch_scc0 L_slow_f2")
    a.lab("L_p1_ready")
    stamp(4)
    e(f"s_cmp_eq_u32 s{sCT}, 13")
    e(f"s_cselect_b32 s{sT0}, s{sWF}, 0")
    e(f"s_cmp_eq_u32 s{sT0}, 1")
    e("s_cbranch_scc1 L_w2_first")
    a.c("h store bases")
    e(f"s_lshl_b32 s{sT0}, s{sRB}, 3")
    e(f"s_lshl_b32 s{sT1}, s{sWM}, 2")
    e(f"s_add_u32 s{sT0}, s{sT0}, s{sT1}")
    e(f"s_mul_i32 s{sT0}, s{sT0}, 54")
    e(f"s_lshl_b32 s{sT1}, s{sCT}, 2")
    e(f"s_add_u32 s{sT0}, s{sT0}, s{sT1}")
    e(f"s_lshl_b32 s{sT1}, s{sWF}, 1")
    e(f"s_add_u32 s{sT0}, s{sT0}, s{sT1}")
    e(f"s_lshl_b32 s{sT0}, s{sT0}, 10")
    e(f"s_add_u32 s{sHS0}, s{sT0}, {WS_H}")
    e(f"s_add_u32 s{sHS1}, s{sHS0}, {2*54*1024}")
    e("s_nop 1")

    nxt = [0]

    def w2some(n):
        for _ in range(n):
            w2load(nxt[0])
            nxt[0] += 1

    pr = lambda r: f"v[{r}:{r+1}]"
    groups = [(tf, tm, p) for tm in range(2) for tf in range(2) for p in range(2)]
    for gi, (tf, tm, p) in enumerate(groups):
        x0 = acc(tf, tm) + 8 * p
        tt = vGT + 8 * (gi & 1)
        oo = vGO + 4 * (gi & 3)
        P = range(0, 8, 2)
        for i in P:
            e(f"v_pk_mul_f32 {pr(tt+i)}, {pr(x0+i)}, {pr(x0+i)}")
        for i in P:
            e(f"v_pk_fma_f32 {pr(tt+i)}, {pr(tt+i)}, s[{sC1}:{sC1+1}], {pr(vC0)}")
        for i in P:
            e(f"v_pk_mul_f32 {pr(tt+i)}, {pr(tt+i)}, {pr(x0+i)}")
        if gi < o.gw_groups:
            w2some(o.gw_n // 2)
        for i in range(8):
            e(f"v_exp_f32_e32 v{tt+i}, v{tt+i}")
        for i in P:
            e(f"v_pk_add_f32 {pr(tt+i)}, {pr(tt+i)}, 1.0 op_sel_hi:[1,0]")
        if gi < o.gw_groups:
            w2some(o.gw_n - o.gw_n // 2)
        for i in range(8):
            e(f"v_rcp_f32_e32 v{tt+i}, v{tt+i}")
        for i in P:
            e(f"v_pk_mul_f32 {pr(tt+i)}, {pr(tt+i)}, {pr(x0+i)}")
        for i in P:
            e(f"v_cvt_pk_bf16_f32 v{oo+i//2}, v{tt+i}, v{tt+i+1}")
        a.vmop(f"buffer_store_dwordx4 {vr(oo,4)}, v{vHS}, {srd(sWS)}, s{sHS0+tm} offen offset:{tf*1024+p*512} sc1", "hst")
    stamp(5)
    w2some(o.aw_n)
    a.c("flag address: WS_F1 + (2rb + wm)*128 + (2ct + wf)*4")
    e(f"s_lshl_b32 s{sT0}, s{sRB}, 1")
    e(f"s_add_u32 s{sT0}, s{sT0}, s{sWM}")
    e(f"s_lshl_b32 s{sT0}, s{sT0}, 5")
    e(f"s_lshl_b32 s{sT1}, s{sCT}, 1")
    e(f"s_add_u32 s{sT0}, s{sT0}, s{sT1}")
    e(f"s_add_u32 s{sT0}, s{sT0}, s{sWF}")
    e(f"s_lshl_b32 s{sT0}, s{sT0}, 2")
    e(f"s_add_u32 s{sT0}, s{sT0}, {WS_F1}")
    e(f"v_mov_b32 v{vTAG}, s{sTAG}")
    e("s_mov_b64 exec, 1")
    a.wait_vm("hst")
    e(f"buffer_store_dword v{vTAG}, off, {srd(sWS)}, s{sT0} sc1")
    e("s_mov_b64 exec, -1")
    stamp(6)
    nfirst = nxt[0]

    a.lab("L_join")
    a.vm = []
    a.c("b2 offset: (80nt + 4*(lane>>4)) * 2")
    t0, t1, t2, t3, t4, t5 = vT
    e(f"v_lshrrev_b32 v{t0}, 4, v{vLANE}")
    e(f"v_lshlrev_b32 v{t1}, 3, v{t0}")
    e(f"s_mul_i32 s{sT0}, s{sNT}, 160")
    for t in range(5):
        a.vmop(f"buffer_load_dwordx2 {vr(vB2+2*t,2)}, v{t1}, {srd(sB2)}, s{sT0} offen offset:{32*t}", "b2")
    if nfirst % 4:
        e(f"s_add_u32 s{sT3}, s{sWPB}, {(nfirst//4)*4096}")
    for j in range(nfirst, 70):
        w2load(j)
    a.c("h fragment bases per round, partial-sum addresses")
    for rho in range(4):
        e(f"s_add_u32 s{sT0}, s{sWV}, {1+rho}")
        e(f"s_and_b32 s{sT0}, s{sT0}, 3")
        if rho < 3:
            e(f"s_mul_i32 s{sT1}, s{sT0}, 15360")
            e(f"s_add_u32 s{sT1}, s{sT1}, {LDS_PART + rho*5120}")
            e(f"v_add_u32 v{vPW+rho}, s{sT1}, v{vL16}")
        e(f"s_lshl_b32 s{sT1}, s{sRT}, 2")
        e(f"s_add_u32 s{sT0}, s{sT0}, s{sT1}")
        e(f"s_mul_i32 s{sT0}, s{sT0}, 54")
        e(f"s_mul_i32 s{sT1}, s{sWV}, 14")
        e(f"s_add_u32 s{sT0}, s{sT0}, s{sT1}")
        e(f"s_lshl_b32 s{sT0}, s{sT0}, 10")
        for q in range(4):
            e(f"s_add_u32 s{sHB+4*rho+q}, s{sT0}, {WS_H + q*4096}")
    e(f"s_mul_i32 s{sT1}, s{sWV}, 15360")
    e(f"s_add_u32 s{sT1}, s{sT1}, {LDS_PART}")
    e(f"v_add_u32 v{vPR}, s{sT1}, v{vL16}")
    stamp(7)
    spin("L_f1", f"buffer_load_dword v{vPOLL}, v{vPA1}, {srd(sWS)}, 0 offen sc1")
    stamp(8)

    def hload(q):
        rho, j = divmod(q, 14)
        v = vL16B if j >= 12 else vL16
        a.vmop(f"buffer_load_dwordx4 {vr(vH+4*(q%NHB),4)}, v{v}, {srd(sWS)}, s{sHB+4*rho+j//4} offen offset:{(j%4)*1024} sc1", f"h{q}")

    for q in range(NHB):
        hload(q)
    for t in range(5):
        d = vA2[3] + 4 * t
        e(f"v_lshlrev_b32 v{d}, 16, v{vB2+2*t}")
        e(f"v_and_b32 v{d+1}, 0xffff0000, v{vB2+2*t}")
        e(f"v_lshlrev_b32 v{d+2}, 16, v{vB2+2*t+1}")
        e(f"v_and_b32 v{d+3}, 0xffff0000, v{vB2+2*t+1}")
    a.c("output transpose addresses")
    vTW, vTR, vOA = vB2, vB2 + 1, vB2 + 4
    e(f"v_and_b32 v{t1}, 15, v{vLANE}")
    e(f"v_mul_u32_u24 v{t1}, 176, v{t1}")
    e(f"v_lshl_add_u32 v{t1}, v{t0}, 3, v{t1}")
    e(f"s_lshl_b32 s{sT0}, s{sWV}, 12")
    e(f"v_add_u32 v{vTW}, s{sT0}, v{t1}")
    for i in range(3):
        e(f"v_add_u32 v{t1}, {64*i}, v{vLANE}")
        e(f"v_mul_u32_u24 v{t2}, 205, v{t1}")
        e(f"v_lshrrev_b32 v{t2}, 11, v{t2}")
        e(f"v_mul_u32_u24 v{t3}, 10, v{t2}")
        e(f"v_sub_u32 v{t3}, v{t1}, v{t3}")
        e(f"v_lshlrev_b32 v{t3}, 4, v{t3}")
        e(f"v_mul_u32_u24 v{t4}, 176, v{t2}")
        e(f"v_add3_u32 v{vTR+i}, v{t4}, v{t3}, s{sT0}")
        e(f"v_mul_u32_u24 v{t4}, 1280, v{t2}")
        e(f"v_add_u32 v{vOA+i}, v{t4}, v{t3}")
    e(f"v_mov_b32 v{t4}, {OOB}")
    e(f"v_cmp_gt_u32 vcc, 32, v{vLANE}")
    e(f"s_lshl_b32 s{sT1}, s{sRT}, 2")
    e(f"s_add_u32 s{sT1}, s{sT1}, s{sWV}")
    e(f"v_cndmask_b32 v{vOA+2}, v{t4}, v{vOA+2}, vcc")
    e(f"s_mul_i32 s{sT1}, s{sT1}, {16*1280}")
    e(f"s_mul_i32 s{sT2}, s{sNT}, 160")
    e(f"s_add_u32 s{sHS0}, s{sT1}, s{sT2}")

    pend = []
    for q in range(56):
        rho, j = divmod(q, 14)
        a.wait_vm(f"h{q}")
        if q == 0:
            stamp(9)
        for t in range(5):
            d = vr(vA2[rho] + 4 * t, 4)
            c = "0" if (j == 0 and rho < 3) else d
            e(f"v_mfma_f32_16x16x32_bf16 {d}, {w2reg(5*j+t)}, {vr(vH+4*(q%NHB),4)}, {c}")
            if t == 2 and pend:
                e(pend.pop(0))
        if q + NHB < 56:
            hload(q + NHB)
        if j == 1 and rho >= 1:
            pend += [f"ds_write_b128 v{vPW+rho-1}, {vr(vA2[rho-1]+4*t,4)} offset:{t*1024}" for t in range(5)]
        if rho == 3 and j == 7:
            e("s_waitcnt lgkmcnt(0)")
            e("s_barrier")
            for r2 in range(3):
                for t in range(5):
                    e(f"ds_read_b128 {vr(vA2[r2]+4*t,4)}, v{vPR} offset:{r2*5120+t*1024}")
        if rho == 3 and j == 10:
            e("s_waitcnt lgkmcnt(0)")
            pend += [f"v_pk_add_f32 {pr(vA2[0]+i)}, {pr(vA2[0]+i)}, {pr(vA2[1]+i)}" for i in range(0, 20, 2)]
            pend += [f"v_pk_add_f32 {pr(vA2[0]+i)}, {pr(vA2[0]+i)}, {pr(vA2[2]+i)}" for i in range(0, 20, 2)]
        if rho == 3 and j >= 10:
            for _ in range(6):
                if pend:
                    e(pend.pop(0))
    while pend:
        e(pend.pop(0))
    stamp(10)
    e("s_nop 7")
    for i in range(0, 20, 2):
        e(f"v_pk_add_f32 {pr(vA2[0]+i)}, {pr(vA2[0]+i)}, {pr(vA2[3]+i)}")
    for i in range(10):
        e(f"v_cvt_pk_bf16_f32 v{vA2[1]+i}, v{vA2[0]+2*i}, v{vA2[0]+2*i+1}")
    for t in range(5):
        e(f"ds_write_b64 v{vTW}, {vr(vA2[1]+2*t,2)} offset:{32*t}")
    e("s_waitcnt lgkmcnt(0)")
    for i in range(3):
        e(f"ds_read_b128 {vr(vA2[2]+4*i,4)}, v{vTR+i}")
    for i in range(3):
        e(f"s_waitcnt lgkmcnt({2-i})")
        e(f"buffer_store_dwordx4 {vr(vA2[2]+4*i,4)}, v{vOA+i}, {srd(sOUT)}, s{sHS0} offen")
    if o.stamps:
        stamp(11)
        e("s_waitcnt vmcnt(0)")
        stamp(12)
        e(f"s_memrealtime s[{sST}:{sST+1}]")
        e("s_waitcnt lgkmcnt(0)")
        e(f"v_writelane_b32 v{vSTA}, s{sST}, 13")
        e(f"s_lshl_b32 s{sT0}, s2, 2")
        e(f"s_add_u32 s{sT0}, s{sT0}, s{sWV}")
        e(f"s_lshl_b32 s{sT0}, s{sT0}, 8")
        e(f"s_add_u32 s{sT0}, s{sT0}, {WS_STAMP}")
        e(f"v_lshlrev_b32 v{t1}, 2, v{vLANE}")
        e(f"buffer_store_dword v{vSTA}, v{t1}, {srd(sWS)}, s{sT0} offen")
        if o.dbgwg >= 0:
            e(f"s_cmp_eq_u32 s2, {o.dbgwg}")
            e("s_cbranch_scc0 L_end")
            e(f"s_cmp_eq_u32 s{sWV}, 0")
            e("s_cbranch_scc0 L_end")
            e(f"v_readlane_b32 s{sT1}, v{vSTA}, 0")
            e(f"s_sub_u32 s{sT2}, s{sST}, s98")
            e("s_nop 1")
            e(f"v_subrev_u32 v{vSTA}, s{sT1}, v{vSTA}")
            e(f"v_writelane_b32 v{vSTA}, s{sT2}, 13")
            e("s_mov_b64 exec, 0x3ffe")
            e(f"buffer_store_dword v{vSTA}, v{t1}, {srd(sDBG)}, 0 offen")
    if o.amp >= 20:
        e("s_waitcnt vmcnt(0)")
        e("s_barrier")
        e(f"s_cmp_eq_u32 s{sWV}, 0")
        e("s_cbranch_scc0 L_end")
        e("s_memrealtime s[100:101]")
        e("s_waitcnt lgkmcnt(0)")
        e("s_mov_b64 exec, 1")
        e("s_not_b32 s99, s98")
        e("v_mov_b32 v2, s99")
        e("v_mov_b32 v3, s98")
        e("v_mov_b32 v4, s100")
        e("v_mov_b32 v5, 1")
        e(f"buffer_atomic_umax v2, off, {srd(sDBG)}, 0 offset:128 sc1")
        e(f"buffer_atomic_umax v3, off, {srd(sDBG)}, 0 offset:132 sc1")
        e(f"buffer_atomic_umax v4, off, {srd(sDBG)}, 0 offset:136 sc1")
        e("s_waitcnt vmcnt(0)")
        e(f"buffer_atomic_add v5, off, {srd(sDBG)}, 0 offset:140 sc1")
        e("s_waitcnt vmcnt(0)")
        e(f"s_cmp_eq_u32 s2, 17")
        e("s_cbranch_scc0 L_end")
        e(f"s_mov_b32 s{sSPIN}, 0")
        a.lab("L_ampw")
        e(f"buffer_load_dwordx4 v[2:5], off, {srd(sDBG)}, 0 offset:128 sc1")
        e("s_waitcnt vmcnt(0)")
        e(f"v_readfirstlane_b32 s{sT0}, v5")
        e(f"s_add_u32 s{sSPIN}, s{sSPIN}, 1")
        e(f"s_cmp_ge_u32 s{sT0}, 256")
        e("s_cbranch_scc1 L_ampg")
        e(f"s_cmp_lt_u32 s{sSPIN}, {SPIN_MAX}")
        e("s_cbranch_scc1 L_ampw")
        a.lab("L_ampg")
        e(f"buffer_load_dwordx4 v[2:5], off, {srd(sDBG)}, 0 offset:128 sc1")
        e("s_waitcnt vmcnt(0)")
        e(f"v_readfirstlane_b32 s98, v2")
        e(f"v_readfirstlane_b32 s100, v{4 if o.amp == 20 else 3}")
        e("s_not_b32 s98, s98")
    if o.amp:
        if o.amp < 20:
            e("s_waitcnt vmcnt(0)")
            stamp(12)
            e(f"s_cmp_eq_u32 s2, 17")
            e("s_cbranch_scc0 L_end")
        e("s_sub_u32 s100, s100, s98")
        e("s_mul_i32 s100, s100, 10")
        e("s_min_u32 s100, s100, 100000")
        e("s_memrealtime s[98:99]")
        e("s_waitcnt lgkmcnt(0)")
        a.lab("L_amp")
        e(f"s_memrealtime s[{sST}:{sST+1}]")
        e("s_waitcnt lgkmcnt(0)")
        e(f"s_sub_u32 s{sT0}, s{sST}, s98")
        e(f"s_cmp_lt_u32 s{sT0}, s100")
        e("s_cbranch_scc1 L_amp")
    a.lab("L_end")
    e("s_endpgm")

    a.lab("L_slow_tag")
    spin_tag("L_st")
    a.lab("L_slow_f2")
    spin("L_sf", f"buffer_load_dword v{vPOLL}, v{vPA2}, {srd(sWS)}, 0 offen sc1")
    e("s_branch L_p1_ready")

    a.lab("L_helper")
    t0, t1, t2, t3, t4, t5 = vT
    sH = sRB
    e(f"s_lshl_b32 s{sH}, s{sJ}, 2")
    e(f"s_add_u32 s{sH}, s{sH}, s{sI}")
    e(f"s_sub_u32 s{sH}, s{sH}, 28")
    if o.codepf:
        e(f"s_getpc_b64 s[{sCODE}:{sCODE+1}]")
        a.lab("L_pc")
        e(f"s_sub_u32 s{sCODE}, s{sCODE}, L_pc-{KNAME}")
        e(f"s_subb_u32 s{sCODE+1}, s{sCODE+1}, 0")
        e(f"s_mov_b32 s{sCODE+2}, L_code_end-{KNAME}")
        e(f"s_mov_b32 s{sCODE+3}, 0x20000")
        e(f"v_lshlrev_b32 v{t0}, 7, v0")
        e(f"buffer_load_dword v{vPOLL}, v{t0}, {srd(sCODE)}, 0 offen")
    e("s_waitcnt lgkmcnt(0)")
    if o.stamps:
        e(f"v_writelane_b32 v{vSTA}, s{sST}, 0")
    mk_srd(sWS, sKA + 14, WS_SIZE)
    mk_srd(sDBG, sKA + 12, 256)
    mk_srd(sOUT, sKA + 10, M * D * 2)
    mk_srd(sB2, sKA + 8, D * 2)
    e(f"s_cmp_eq_u32 s{sH}, 31")
    e("s_cbranch_scc0 L_notpub")
    e(f"s_cmp_eq_u32 s{sWV}, 0")
    e("s_cbranch_scc0 L_notpub")
    a.c("publish this launch's tag: previous tag advanced by an odd constant, never zero")
    e(f"buffer_load_dword v{vTAG}, off, {srd(sWS)}, 0 offset:{WS_EPOCH} sc1")
    e("s_waitcnt vmcnt(0)")
    e(f"v_add_u32 v{vTAG}, 0x9e3779b9, v{vTAG}")
    e(f"v_mov_b32 v{t0}, 0x9e3779b9")
    e(f"v_cmp_eq_u32 vcc, 0, v{vTAG}")
    e("s_nop 1")
    e(f"v_cndmask_b32 v{vTAG}, v{vTAG}, v{t0}, vcc")
    e("s_mov_b64 exec, 1")
    e(f"buffer_store_dword v{vTAG}, off, {srd(sDBG)}, 0 sc1")
    e(f"buffer_store_dword v{vTAG}, off, {srd(sWS)}, 0 offset:{WS_EPOCH} sc1")
    e("s_mov_b64 exec, -1")
    a.lab("L_notpub")
    e(f"s_cmp_ge_u32 s{sH}, 27")
    e("s_cbranch_scc1 L_noconv")
    mk_srd(sW2, sKA + 6, F * D * 2)
    sS = sCT
    e(f"s_lshl_b32 s{sS}, s{sH}, 1")
    e(f"s_add_u32 s{sS}, s{sS}, s{sWM}")
    e(f"v_lshrrev_b32 v{t0}, 3, v{vLANE}")
    e(f"v_mul_u32_u24 v{t0}, 1280, v{t0}")
    e(f"v_and_b32 v{t1}, 7, v{vLANE}")
    e(f"v_lshrrev_b32 v{t2}, 4, v{vLANE}")
    e(f"v_lshlrev_b32 v{t3}, 1, v{t2}")
    e(f"v_xor_b32 v{t1}, v{t1}, v{t3}")
    e(f"v_lshl_add_u32 v{vXD}, v{t1}, 4, v{t0}")
    for n in range(1, 4):
        e(f"v_add_u32 v{vXD+n}, {n*(10240-1024)}, v{vXD}")
    e(f"s_mul_i32 s{sXO}, s{sS}, {32*1280}")
    e(f"s_mul_i32 s{sT0}, s{sWF}, 640")
    e(f"s_add_u32 s{sXO}, s{sXO}, s{sT0}")
    e(f"s_mul_i32 s{sMX}, s{sWV}, 20480")
    a.vm = []
    for cb in range(5):
        e(f"s_add_u32 m0, s{sMX}, {cb*4096}")
        e(f"s_add_u32 s{sT0}, s{sXO}, {cb*128}")
        for n in range(4):
            a.vmop(f"buffer_load_dwordx4 v{vXD+n}, {srd(sW2)}, s{sT0} offen offset:{n*1024} lds", f"c{cb}")
    a.c("transpose-read addresses: row = 16P + 4hf + (i>>2), key = (2hf + (i>>3)) & 3")
    e(f"v_lshrrev_b32 v{t0}, 5, v{vLANE}")
    e(f"v_bfe_u32 v{t1}, v{vLANE}, 4, 1")
    e(f"v_bfe_u32 v{t2}, v{vLANE}, 2, 2")
    e(f"v_lshl_add_u32 v{t2}, v{t1}, 2, v{t2}")
    e(f"v_lshl_add_u32 v{t2}, v{t0}, 4, v{t2}")
    e(f"v_bfe_u32 v{t3}, v{t2}, 1, 2")
    e(f"v_and_b32 v{t4}, 3, v{vLANE}")
    e(f"v_lshlrev_b32 v{t4}, 3, v{t4}")
    e(f"v_lshl_add_u32 v{t2}, v{t2}, 7, v{t4}")
    e(f"v_add_u32 v{t2}, s{sMX}, v{t2}")
    for u in range(4):
        e(f"v_xor_b32 v{t4}, {u}, v{t3}")
        e(f"v_lshl_add_u32 v{vXR+u}, v{t4}, 5, v{t2}")
    e(f"s_mul_i32 s{sT1}, s{sWF}, {4*54}")
    e(f"s_add_u32 s{sT1}, s{sT1}, s{sS}")
    e(f"s_mul_i32 s{sT1}, s{sT1}, 5120")
    e(f"s_add_u32 s{sT1}, s{sT1}, {WS_WP}")
    for cb in range(5):
        a.wait_vm(f"c{cb}")
        for u in range(4):
            for h in range(2):
                e(f"ds_read_b64_tr_b16 {vr(vACC+16*cb+4*u+2*h,2)}, v{vXR+u} offset:{cb*4096+h*1024}")
        e("s_waitcnt lgkmcnt(0)")
        for u in range(4):
            ntl, t = divmod(4 * cb + u, 5)
            e(f"s_add_u32 s{sT0}, s{sT1}, {ntl*54*5120 + t*1024}")
            a.vmop(f"buffer_store_dwordx4 {vr(vACC+16*cb+4*u,4)}, v{vL16}, {srd(sWS)}, s{sT0} offen sc1", "cst")
    stamp(1)
    spin_tag("L_ht")
    e(f"s_lshl_b32 s{sT0}, s{sWF}, 6")
    e(f"s_add_u32 s{sT0}, s{sT0}, s{sS}")
    e(f"s_lshl_b32 s{sT0}, s{sT0}, 2")
    e(f"s_add_u32 s{sT0}, s{sT0}, {WS_F2}")
    e("s_mov_b64 exec, 1")
    e(f"buffer_store_dword v{vTAG}, off, {srd(sWS)}, s{sT0} sc1")
    e("s_mov_b64 exec, -1")
    stamp(2)
    a.lab("L_noconv")
    spin_tag("L_ht2")
    spin("L_hf", f"buffer_load_dword v{vPOLL}, v{vPA2}, {srd(sWS)}, 0 offen sc1")
    stamp(4)
    a.lab("L_w2_first")
    for j in range(nfirst):
        w2load(j)
    e("s_branch L_join")
    a.lab("L_code_end")

    head = [
        "; Fused MLP: out = gelu_tanh(x @ w1 + b1) @ w2 + b2, bf16, x 2048x640, w1 640x1728, w2 1728x640.",
        "; kernarg: 0 x, 8 w1, 16 b1, 24 w2, 32 b2, 40 out, 48 debug (zeroed), 56 workspace",
        f"; @launch grid=(256,1,1) block=(256,1,1) lds={LDS_BYTES}",
        '.amdgcn_target "amdgcn-amd-amdhsa--gfx950"',
        ".text",
        f".globl {KNAME}",
        ".p2align 8",
        f".type {KNAME},@function",
    ]
    tail = [
        '.section .rodata,"a"',
        ".p2align 6",
        f".amdhsa_kernel {KNAME}",
        "  .amdhsa_next_free_vgpr 512",
        "  .amdhsa_next_free_sgpr 102",
        "  .amdhsa_accum_offset 256",
        "  .amdhsa_group_segment_fixed_size 0",
        "  .amdhsa_kernarg_size 64",
        "  .amdhsa_user_sgpr_count 2",
        "  .amdhsa_user_sgpr_kernarg_segment_ptr 1",
        "  .amdhsa_system_sgpr_workgroup_id_x 1",
        ".end_amdhsa_kernel",
    ]
    return "\n".join(head + a.l + tail) + "\n"


if __name__ == "__main__":
    ap = argparse.ArgumentParser()
    ap.add_argument("-o", default="standalone__dense_activation_gelu__prompt.s")
    ap.add_argument("--stamps", type=int, default=0)
    ap.add_argument("--rot", type=int, default=0)
    ap.add_argument("--amp", type=int, default=0)
    ap.add_argument("--dbgwg", type=int, default=-1)
    ap.add_argument("--gw_groups", type=int, default=6)
    ap.add_argument("--gw_n", type=int, default=3)
    ap.add_argument("--aw_n", type=int, default=6)
    ap.add_argument("--codepf", type=int, default=1)
    o = ap.parse_args()
    open(o.o, "w").write(build(o))
```

```python
import argparse

KNAME = "standalone__dense_activation_gelu__prompt_kernel"
M, D, F = 2048, 640, 1728
WS_EPOCH = 0
WS_F1 = 4096
WS_F2 = 8192
WS_STAMP = 12 << 20
WS_WP = 1 << 20
WS_H = 4 << 20
WS_SIZE = 16 << 20
OOB = 0x40000000
SPIN_MAX = 400000

LDS_W = 49152
LDS_PART = 98304
LDS_BYTES = 163840

LEAD = [[0, 4, 8, 1, 2, 3, 5, 6, 7, 9], [1, 5, 9, 0, 2, 3, 4, 6, 7, 8],
        [2, 6, 0, 1, 3, 4, 5, 7, 8, 9], [3, 7, 0, 1, 2, 4, 5, 6, 8, 9]]

sWV, sJ, sI = 3, 4, 5
sORD = 6
sX, sW1, sWS, sOUT, sW2, sB1, sB2, sDBG = 8, 12, 16, 20, 24, 28, 32, 36
sKA = 40
sRB, sCT, sRT, sNT = 56, 57, 58, 59
sTAG = 60
sXO, sWO, sSH = 61, 62, 63
sT0, sT1, sT2, sT3 = 64, 65, 66, 67
sMX, sMW = 68, 69
sHB = 70
sXB, sWB = 70, 71
sC1 = 86
sWPB = 88
sSPIN = 89
sMSK = 90
sLATE = 92
sWM, sWF = 94, 95
sHS0, sHS1 = 96, 97
sCODE = 24
STAMP_REGS = [98, 100, 40, 42, 44, 46, 48, 50, 52, 54]

vLANE = 1
vT = [2, 3, 4, 5, 6, 7]
vC0 = 8
vL16 = 10
vL16B = 11
vPOLL, vPA1, vPA2 = 12, 13, 14
vTAG = 15
vXD, vWD = 16, 20
vXR, vWR = 24, 28
vHS = 30
vL16W = 31
vONE = 32
vFA, vFB = 36, 52
vACC = 68
vGT = 132
vBA = 148
vGO = 164
vH = 132
vA2 = [36, 56, 76, 196]
vB2 = 216
vPW = 226
vPR = 229
vCP = 230
vW2V = 232
NHB = 16


class Asm:
    def __init__(self):
        self.l = []
        self.vm = []

    def e(self, s):
        self.l.append("    " + s)

    def lab(self, s):
        self.l.append(s + ":")

    def c(self, s):
        self.l.append("    ; " + s)

    def vmop(self, s, tag):
        self.e(s)
        self.vm.append(tag)

    def vmn(self, tag):
        idx = max(i for i, t in enumerate(self.vm) if t == tag)
        n = len(self.vm) - idx - 1
        self.vm = self.vm[idx + 1:]
        return min(n, 63)

    def wait_vm(self, tag, extra=""):
        self.e(f"s_waitcnt vmcnt({self.vmn(tag)}){extra}")

    def wait_vm0(self):
        self.vm = []
        self.e("s_waitcnt vmcnt(0)")


def vr(a, n):
    return f"v[{a}:{a+n-1}]"


def pr(r):
    return f"v[{r}:{r+1}]"


def srd(r):
    return f"s[{r}:{r+3}]"


def w2reg(j):
    return f"a[{4*j}:{4*j+3}]" if j < 64 else vr(vW2V + 4 * (j - 64), 4)


def build(o):
    a = Asm()
    e = a.e
    t0, t1, t2, t3, t4, t5 = vT
    smap = {}
    if o.stamps:
        for n, k in enumerate(o.stamps.split(",")):
            smap[k] = STAMP_REGS[n + 2]

    def stamp(k):
        if k in smap:
            e(f"s_memtime s[{smap[k]}:{smap[k]+1}]")

    def mk_srd(r, p, n):
        e(f"s_mov_b32 s{r}, s{p}")
        e(f"s_mov_b32 s{r+1}, s{p+1}")
        e(f"s_mov_b32 s{r+2}, {n}")
        e(f"s_mov_b32 s{r+3}, 0x20000")

    def spin(label, addr):
        e(f"s_mov_b32 s{sSPIN}, 0")
        a.lab(label)
        e(f"buffer_load_dword v{vPOLL}, v{addr}, {srd(sWS)}, 0 offen sc1")
        e("s_waitcnt vmcnt(0)")
        e(f"v_cmp_ne_u32 s[{sMSK}:{sMSK+1}], s{sTAG}, v{vPOLL}")
        e(f"s_add_u32 s{sSPIN}, s{sSPIN}, 1")
        e(f"s_cmp_eq_u64 s[{sMSK}:{sMSK+1}], 0")
        e(f"s_cbranch_scc1 {label}_ok")
        e(f"s_cmp_lt_u32 s{sSPIN}, {SPIN_MAX}")
        e(f"s_cbranch_scc1 {label}")
        a.lab(label + "_ok")
        a.vm = []

    def spin_tag(label):
        e(f"s_mov_b32 s{sSPIN}, 0")
        a.lab(label)
        e(f"buffer_load_dword v{vTAG}, off, {srd(sDBG)}, 0 sc1")
        e("s_waitcnt vmcnt(0)")
        e(f"v_readfirstlane_b32 s{sTAG}, v{vTAG}")
        e(f"s_add_u32 s{sSPIN}, s{sSPIN}, 1")
        e(f"s_cmp_lg_u32 s{sTAG}, 0")
        e(f"s_cbranch_scc1 {label}_ok")
        e(f"s_cmp_lt_u32 s{sSPIN}, {SPIN_MAX}")
        e(f"s_cbranch_scc1 {label}")
        a.lab(label + "_ok")
        a.vm = []

    def w2load(j, v=None, force=False):
        if j % 4 == 0 or force:
            e(f"s_add_u32 s{sT3}, s{sWPB}, {(j//4)*4096}")
        if v is None or j >= 60:
            v = vL16B if j >= 60 else vL16
        a.vmop(f"buffer_load_dwordx4 {w2reg(j)}, v{v}, {srd(sWS)}, s{sT3} offen offset:{(j%4)*1024} sc1", f"w{j}")

    def next_slab():
        e(f"s_and_b32 s{sT0}, s{sORD}, 15")
        e(f"s_lshr_b64 s[{sORD}:{sORD+1}], s[{sORD}:{sORD+1}], 4")
        e(f"s_add_u32 s{sT0}, s{sT0}, s{sSH}")
        e(f"s_cmp_ge_u32 s{sT0}, 10")
        e(f"s_cselect_b32 s{sT1}, 10, 0")
        e(f"s_sub_u32 s{sT0}, s{sT0}, s{sT1}")
        e(f"s_lshl_b32 s{sT1}, s{sT0}, 7")
        e(f"s_add_u32 s{sXO}, s{sXB}, s{sT1}")
        e(f"s_mul_i32 s{sT1}, s{sT0}, {64*3456}")
        e(f"s_add_u32 s{sWO}, s{sWB}, s{sT1}")

    def common_setup():
        mk_srd(sWS, sKA + 14, WS_SIZE)
        mk_srd(sDBG, sKA + 12, 256)
        mk_srd(sOUT, sKA + 10, M * D * 2)
        mk_srd(sB2, sKA + 8, D * 2)
        a.c("phase-2 tile: rt = 8*(j>>1) + (i>>2), nt = 4*(j&1) + (i&3)")
        e(f"s_lshr_b32 s{sT0}, s{sJ}, 1")
        e(f"s_lshl_b32 s{sRT}, s{sT0}, 3")
        e(f"s_lshr_b32 s{sT1}, s{sI}, 2")
        e(f"s_add_u32 s{sRT}, s{sRT}, s{sT1}")
        e(f"s_and_b32 s{sT1}, s{sJ}, 1")
        e(f"s_lshl_b32 s{sNT}, s{sT1}, 2")
        e(f"s_and_b32 s{sT2}, s{sI}, 3")
        e(f"s_add_u32 s{sNT}, s{sNT}, s{sT2}")
        a.c("b2 offset: (80nt + 4*(lane>>4)) * 2")
        e(f"v_lshrrev_b32 v{t0}, 4, v{vLANE}")
        e(f"v_lshlrev_b32 v{t1}, 3, v{t0}")
        e(f"s_mul_i32 s{sT0}, s{sNT}, 160")
        for t in range(5):
            a.vmop(f"buffer_load_dwordx2 {vr(vB2+2*t,2)}, v{t1}, {srd(sB2)}, s{sT0} offen offset:{32*t}", "b2")
        e(f"v_lshlrev_b32 v{vL16}, 4, v{vLANE}")
        e(f"s_cmp_eq_u32 s{sWV}, 3")
        e(f"s_cselect_b32 s{sT0}, {OOB}, 0")
        e(f"v_or_b32 v{vL16B}, s{sT0}, v{vL16}")
        a.c("packed-w2 base of this wave and polling addresses")
        e(f"s_mul_i32 s{sWPB}, s{sNT}, 54")
        e(f"s_mul_i32 s{sT0}, s{sWV}, 14")
        e(f"s_add_u32 s{sWPB}, s{sWPB}, s{sT0}")
        e(f"s_mul_i32 s{sWPB}, s{sWPB}, 5120")
        e(f"s_add_u32 s{sWPB}, s{sWPB}, {WS_WP}")
        e(f"v_min_u32 v{vPA2}, 13, v{vLANE}")
        e(f"v_add_u32 v{vPA2}, s{sT0}, v{vPA2}")
        e(f"v_min_u32 v{vPA2}, 53, v{vPA2}")
        e(f"s_lshr_b32 s{sT1}, s{sNT}, 2")
        e(f"s_lshl_b32 s{sT1}, s{sT1}, 8")
        e(f"s_add_u32 s{sT1}, s{sT1}, {WS_F2}")
        e(f"v_lshl_add_u32 v{vPA2}, v{vPA2}, 2, s{sT1}")
        e(f"s_mul_i32 s{sT0}, s{sWV}, 7")
        e(f"v_min_u32 v{vPA1}, 6, v{vLANE}")
        e(f"v_add_u32 v{vPA1}, s{sT0}, v{vPA1}")
        e(f"v_min_u32 v{vPA1}, 26, v{vPA1}")
        e(f"s_lshl_b32 s{sT1}, s{sRT}, 7")
        e(f"s_add_u32 s{sT1}, s{sT1}, {WS_F1}")
        e(f"v_lshl_add_u32 v{vPA1}, v{vPA1}, 2, s{sT1}")

    a.lab(KNAME)
    if o.stamps or o.span:
        e("s_memtime s[98:99]")
        e("s_memrealtime s[100:101]")
    e("s_cmp_ge_u32 s2, 256")
    e("s_cbranch_scc1 L_end")
    e(f"s_load_dwordx16 s[{sKA}:{sKA+15}], s[0:1], 0")
    e(f"v_lshrrev_b32 v{t0}, 6, v0")
    e(f"v_and_b32 v{vLANE}, 63, v0")
    e(f"v_readfirstlane_b32 s{sWV}, v{t0}")
    e(f"s_lshr_b32 s{sI}, s2, 3")
    if o.codepf:
        a.c("bring this kernel's code into L2: 32 lines per workgroup, slice i & 7, lanes 0-31 of wave 0")
        e(f"s_getpc_b64 s[{sCODE}:{sCODE+1}]")
        a.lab("L_pc")
        e(f"s_mov_b32 s{sCODE+2}, L_code_end-L_pc")
        e(f"s_mov_b32 s{sCODE+3}, 0x20000")
        e(f"s_and_b32 s{sT0}, s{sI}, 7")
        e(f"s_lshl_b32 s{sT0}, s{sT0}, 12")
        e(f"v_lshlrev_b32 v{t1}, 7, v0")
        e(f"v_cmp_gt_u32 vcc, 32, v0")
        e(f"v_mov_b32 v{t2}, {OOB}")
        e(f"s_and_b32 s{sJ}, s2, 7")
        e(f"v_cndmask_b32 v{t1}, v{t2}, v{t1}, vcc")
        a.vmop(f"buffer_load_dword v{vCP}, v{t1}, {srd(sCODE)}, s{sT0} offen", "cp")
    else:
        e(f"s_and_b32 s{sJ}, s2, 7")
    e(f"s_lshr_b32 s{sWM}, s{sWV}, 1")
    e(f"s_and_b32 s{sWF}, s{sWV}, 1")
    e(f"s_cmp_ge_u32 s{sI}, 28")
    e("s_cbranch_scc1 L_helper")

    a.c("phase-1 tile: rb = 4*(j>>1) + i/7, ct = 7*(j&1) + i%7")
    e(f"s_mul_i32 s{sT2}, s{sI}, 37")
    e(f"s_lshr_b32 s{sT2}, s{sT2}, 8")
    e(f"s_mul_i32 s{sT3}, s{sT2}, 7")
    e(f"s_sub_u32 s{sT3}, s{sI}, s{sT3}")
    e(f"s_lshr_b32 s{sT0}, s{sJ}, 1")
    e(f"s_and_b32 s{sT1}, s{sJ}, 1")
    e(f"s_lshl_b32 s{sRB}, s{sT0}, 2")
    e(f"s_add_u32 s{sRB}, s{sRB}, s{sT2}")
    e(f"s_mul_i32 s{sCT}, s{sT1}, 7")
    e(f"s_add_u32 s{sCT}, s{sCT}, s{sT3}")
    a.c("slab order: group (r + c) & 3 fetches different slabs first, shifted per XCD")
    if o.xshift:
        e(f"s_mul_i32 s{sSH}, s{sT1}, 5")
        e(f"s_add_u32 s{sSH}, s{sSH}, s{sT0}")
    else:
        e(f"s_mov_b32 s{sSH}, 0")
    e(f"s_add_u32 s{sT2}, s{sT2}, s{sT3}")
    packed = [sum(v << (4 * k) for k, v in enumerate(L)) for L in LEAD]
    assert packed[2] >> 32 == packed[3] >> 32 == 0x98
    e(f"s_bitcmp1_b32 s{sT2}, 0")
    e(f"s_mov_b32 s{sT0}, {hex(packed[0] & 0xffffffff)}")
    e(f"s_cselect_b32 s{sT0}, {hex(packed[1] & 0xffffffff)}, s{sT0}")
    e(f"s_mov_b32 s{sT1}, {hex(packed[2] & 0xffffffff)}")
    e(f"s_cselect_b32 s{sT1}, {hex(packed[3] & 0xffffffff)}, s{sT1}")
    e(f"s_mov_b32 s{sT3}, {hex(packed[0] >> 32)}")
    e(f"s_cselect_b32 s{sT3}, {hex(packed[1] >> 32)}, s{sT3}")
    e(f"s_bitcmp1_b32 s{sT2}, 1")
    e(f"s_cselect_b32 s{sORD}, s{sT1}, s{sT0}")
    e(f"s_cselect_b32 s{sORD+1}, 0x98, s{sT3}")
    e(f"s_mul_i32 s{sXB}, s{sRB}, {128*1280}")
    e(f"s_mul_i32 s{sT1}, s{sWV}, {32*1280}")
    e(f"s_add_u32 s{sXB}, s{sXB}, s{sT1}")
    e(f"s_lshl_b32 s{sWB}, s{sCT}, 8")
    e(f"s_mul_i32 s{sT1}, s{sWV}, {16*3456}")
    e(f"s_add_u32 s{sWB}, s{sWB}, s{sT1}")
    next_slab()
    e(f"s_lshl_b32 s{sMX}, s{sWV}, 12")
    e(f"s_add_u32 s{sMW}, s{sMX}, {LDS_W}")
    a.c("x staging offsets: row = 8n + (lane>>3), chunk = (lane&7) ^ ((4n + (lane>>4)) & 7)")
    e(f"v_lshrrev_b32 v{t0}, 3, v{vLANE}")
    e(f"v_mul_u32_u24 v{t0}, 1280, v{t0}")
    e(f"v_and_b32 v{t1}, 7, v{vLANE}")
    e(f"v_lshrrev_b32 v{t2}, 4, v{vLANE}")
    e(f"v_xor_b32 v{t1}, v{t1}, v{t2}")
    e(f"v_xor_b32 v{t3}, 4, v{t1}")
    e(f"v_lshl_add_u32 v{vXD}, v{t1}, 4, v{t0}")
    e(f"v_lshl_add_u32 v{vXD+1}, v{t3}, 4, v{t0}")
    e(f"v_add_u32 v{vXD+2}, {2*(10240-1024)}, v{vXD}")
    e(f"v_add_u32 v{vXD+3}, {3*(10240-1024)}, v{vXD+1}")
    e(f"v_add_u32 v{vXD+1}, {10240-1024}, v{vXD+1}")
    a.c("w1 staging offsets: row = 4n + (lane>>4), chunk = (lane&15) ^ ((lane>>4) << 2)")
    e(f"v_mul_u32_u24 v{t0}, 3456, v{t2}")
    e(f"v_and_b32 v{t1}, 15, v{vLANE}")
    e(f"v_lshlrev_b32 v{t3}, 2, v{t2}")
    e(f"v_xor_b32 v{t1}, v{t1}, v{t3}")
    e(f"v_lshl_add_u32 v{vWD}, v{t1}, 4, v{t0}")
    e(f"s_cmp_eq_u32 s{sCT}, 13")
    e(f"s_cselect_b32 s{sT0}, 8, 16")
    e(f"v_mov_b32 v{t3}, {OOB}")
    e(f"v_cmp_gt_u32 vcc, s{sT0}, v{t1}")
    e(f"s_lshl_b32 s{sT2}, s{sCT}, 8")
    e(f"s_lshl_b32 s{sT3}, s{sWF}, 7")
    e(f"v_cndmask_b32 v{vWD}, v{t3}, v{vWD}, vcc")
    for n in range(1, 4):
        e(f"v_add_u32 v{vWD+n}, {n*(4*3456-1024)}, v{vWD}")
    e(f"s_add_u32 s{sHS0}, s{sT2}, s{sT3}")
    e("s_waitcnt lgkmcnt(0)")
    mk_srd(sX, sKA + 0, M * D * 2)
    mk_srd(sW1, sKA + 2, D * F * 2)

    def slab_ops(s):
        slot = s % 3
        ops = []

        def ld(n, isx):
            def f():
                if n == 0:
                    e(f"s_add_u32 m0, s{sMX if isx else sMW}, {slot*16384}")
                    e("s_nop 0")
                if isx:
                    a.vmop(f"buffer_load_dwordx4 v{vXD+n}, {srd(sX)}, s{sXO} offen offset:{n*1024} lds", f"s{s}")
                else:
                    a.vmop(f"buffer_load_dwordx4 v{vWD+n}, {srd(sW1)}, s{sWO} offen offset:{n*1024} lds", f"s{s}")
                if n == 3 and not isx and s < 9:
                    next_slab()
            return f
        for n in range(4):
            ops.append(ld(n, True))
        for n in range(4):
            ops.append(ld(n, False))
        return ops

    for f in slab_ops(0):
        f()
    a.c("b1 as an A fragment: lanes 0-31 hold b1[f] at k = 0")
    mk_srd(sB1, sKA + 4, F * 2)
    e(f"v_lshlrev_b32 v{t0}, 1, v{vLANE}")
    e(f"v_cmp_gt_u32 vcc, 32, v{vLANE}")
    for r in (1, 2, 3, 5, 6, 7):
        e(f"v_mov_b32 v{vBA+r}, 0")
    e(f"v_cndmask_b32 v{t0}, v{t3}, v{t0}, vcc")
    for tf in range(2):
        a.vmop(f"buffer_load_ushort v{vBA+4*tf}, v{t0}, {srd(sB1)}, s{sHS0} offen offset:{64*tf}", "b1")
    for f in slab_ops(1):
        f()
    common_setup()
    stamp("issued")
    a.c("fragment read addresses")
    e(f"v_lshrrev_b32 v{t4}, 5, v{vLANE}")
    e(f"v_and_b32 v{t0}, 31, v{vLANE}")
    e(f"s_lshl_b32 s{sT0}, s{sWM}, 13")
    e(f"v_lshl_add_u32 v{t1}, v{t0}, 7, s{sT0}")
    e(f"v_bfe_u32 v{t0}, v{vLANE}, 1, 3")
    e(f"v_xor_b32 v{t0}, v{t0}, v{t4}")
    for ks in range(4):
        e(f"v_xor_b32 v{t2}, {2*ks}, v{t0}")
        e(f"v_lshl_add_u32 v{vXR+ks}, v{t2}, 4, v{t1}")
    e(f"v_bfe_u32 v{t0}, v{vLANE}, 2, 2")
    e(f"v_lshl_add_u32 v{t1}, v{t4}, 3, v{t0}")
    e(f"v_lshlrev_b32 v{t1}, 8, v{t1}")
    e(f"s_lshl_b32 s{sT0}, s{sWF}, 1")
    e(f"v_xor_b32 v{t0}, s{sT0}, v{t0}")
    e(f"v_lshl_add_u32 v{t1}, v{t0}, 6, v{t1}")
    e(f"v_bfe_u32 v{t0}, v{vLANE}, 4, 1")
    e(f"v_lshl_add_u32 v{t1}, v{t0}, 5, v{t1}")
    e(f"v_and_b32 v{t2}, 3, v{vLANE}")
    e(f"v_lshl_add_u32 v{t1}, v{t2}, 3, v{t1}")
    e(f"v_add_u32 v{vWR}, {LDS_W}, v{t1}")
    e(f"v_xor_b32 v{vWR+1}, 64, v{vWR}")
    a.c("h store offset: ((lane>>4)&1)*54 KiB + (lane>>5)*256 + (lane&15)*16")
    e(f"v_mul_u32_u24 v{vHS}, {54*1024}, v{t0}")
    e(f"v_lshl_add_u32 v{vHS}, v{t4}, 8, v{vHS}")
    e(f"v_and_b32 v{t2}, 15, v{vLANE}")
    e(f"v_lshl_add_u32 v{vHS}, v{t2}, 4, v{vHS}")
    e(f"v_mov_b32 v{vC0}, 0xc0135761")
    e(f"v_mov_b32 v{vC0+1}, 0xc0135761")
    e(f"s_mov_b32 s{sC1}, 0xbdd2d3e8")
    e(f"s_mov_b32 s{sC1+1}, 0xbdd2d3e8")
    e(f"v_mov_b32 v{vONE}, 0x3f80")
    for r in range(1, 4):
        e(f"v_mov_b32 v{vONE+r}, 0")
    a.c("h store bases and flag address")
    e(f"s_lshl_b32 s{sT0}, s{sRB}, 3")
    e(f"s_lshl_b32 s{sT1}, s{sWM}, 2")
    e(f"s_add_u32 s{sT0}, s{sT0}, s{sT1}")
    e(f"s_mul_i32 s{sT0}, s{sT0}, 54")
    e(f"s_lshl_b32 s{sT1}, s{sCT}, 2")
    e(f"s_add_u32 s{sT0}, s{sT0}, s{sT1}")
    e(f"s_lshl_b32 s{sT1}, s{sWF}, 1")
    e(f"s_add_u32 s{sT0}, s{sT0}, s{sT1}")
    e(f"s_lshl_b32 s{sT0}, s{sT0}, 10")
    e(f"s_add_u32 s{sHS0}, s{sT0}, {WS_H}")
    e(f"s_add_u32 s{sHS1}, s{sHS0}, {2*54*1024}")
    sF1A = sB1
    e(f"s_lshl_b32 s{sT0}, s{sRB}, 1")
    e(f"s_add_u32 s{sT0}, s{sT0}, s{sWM}")
    e(f"s_lshl_b32 s{sT0}, s{sT0}, 5")
    e(f"s_lshl_b32 s{sT1}, s{sCT}, 1")
    e(f"s_add_u32 s{sT0}, s{sT0}, s{sT1}")
    e(f"s_add_u32 s{sT0}, s{sT0}, s{sWF}")
    e(f"s_lshl_b32 s{sT0}, s{sT0}, 2")
    e(f"s_add_u32 s93, s{sT0}, {WS_F1}")

    acc = lambda tf, tm: vACC + 16 * (2 * tm + tf)
    fa = lambda b, t: vFA + 8 * b + 4 * t
    fb = lambda b, t: vFB + 8 * b + 4 * t

    def reads(s, ks):
        b = ks & 1
        slot = s % 3
        r = []
        for t in range(2):
            r.append(f"ds_read_b128 {vr(fb(b,t),4)}, v{vXR+ks} offset:{slot*16384 + t*4096}")
            for h in range(2):
                r.append(f"ds_read_b64_tr_b16 {vr(fa(b,t)+2*h,2)}, v{vWR+t} offset:{slot*16384 + ks*4096 + h*1024}")
        return r

    def mfmas(ks, first=False):
        b = ks & 1
        return [f"v_mfma_f32_32x32x16_bf16 {vr(acc(tf,tm),16)}, {vr(fa(b,tf),4)}, {vr(fb(b,tm),4)}, {'0' if first else vr(acc(tf,tm),16)}"
                for tm in range(2) for tf in range(2)]

    nxt = [0]

    def w2early():
        w2load(nxt[0], vL16W)
        nxt[0] += 1

    for it in range(10):
        a.c(f"slab {it}")
        if it == o.chk:
            a.wait_vm("tag", " lgkmcnt(0)")
            assert not any(t == f"s{it}" for t in a.vm)
        else:
            a.wait_vm(f"s{it}", " lgkmcnt(0)")
        e("s_barrier")
        stamp(f"s{it}")
        dma = slab_ops(it + 2) if it + 2 < 10 else [w2early] * o.pw_n
        for r in reads(it, 0):
            e(r)
        if it == o.chk:
            a.c("launch tag and w2 flags: early w2 loads are turned off when they are not there yet")
            e(f"v_readfirstlane_b32 s{sTAG}, v{vTAG}")
            e(f"v_mov_b32 v{vL16W}, v{vL16}")
            e(f"s_mov_b32 s{sLATE}, 0")
            e(f"v_cmp_ne_u32 s[{sMSK}:{sMSK+1}], s{sTAG}, v{vPOLL}")
            e(f"s_cmp_eq_u32 s{sTAG}, 0")
            e("s_cbranch_scc1 L_late")
            e(f"s_cmp_eq_u64 s[{sMSK}:{sMSK+1}], 0")
            e("s_cbranch_scc0 L_late")
            a.lab("L_late_done")
        if it > 0:
            for k, m in enumerate(mfmas(3)):
                e(m)
                if k in (0, 2) and dma:
                    dma.pop(0)()
        if it == 1:
            for tm in range(2):
                for tf in range(2):
                    e(f"v_mfma_f32_32x32x16_bf16 {vr(acc(tf,tm),16)}, {vr(vBA+4*tf,4)}, {vr(vONE,4)}, {vr(acc(tf,tm),16)}")
        for ks in range(3):
            for r in reads(it, ks + 1):
                e(r)
            e("s_waitcnt lgkmcnt(6)")
            for k, m in enumerate(mfmas(ks, it == 0 and ks == 0)):
                e(m)
                if k in (0, 2) and dma:
                    dma.pop(0)()
        while dma:
            dma.pop(0)()
        if it == o.chk - 2:
            pass
        if it + 2 == o.chk:
            a.vmop(f"buffer_load_dword v{vTAG}, off, {srd(sDBG)}, 0 sc1", "tag")
            a.vmop(f"buffer_load_dword v{vPOLL}, v{vPA2}, {srd(sWS)}, 0 offen sc1", "tag")
    e("s_waitcnt lgkmcnt(0)")
    for m in mfmas(3):
        e(m)
    stamp("p1end")
    if o.p1only:
        e("s_branch L_fin")
    e(f"s_cmp_eq_u32 s{sCT}, 13")
    e(f"s_cselect_b32 s{sT0}, s{sWF}, 0")
    e(f"s_cmp_eq_u32 s{sT0}, 1")
    e("s_cbranch_scc1 L_nogelu")
    e("s_nop 4")
    nearly = nxt[0]

    groups = [(tf, tm, p) for tm in range(2) for tf in range(2) for p in range(2)]
    for gi, (tf, tm, p) in enumerate(groups):
        x0 = acc(tf, tm) + 8 * p
        tt = vGT + 8 * (gi & 1)
        oo = vGO + 4 * (gi & 3)
        P = range(0, 8, 2)
        nw = o.gw_n if gi < o.gw_groups else 0
        for i in P:
            e(f"v_pk_mul_f32 {pr(tt+i)}, {pr(x0+i)}, {pr(x0+i)}")
        for i in P:
            e(f"v_pk_fma_f32 {pr(tt+i)}, {pr(tt+i)}, s[{sC1}:{sC1+1}], {pr(vC0)}")
        for i in P:
            e(f"v_pk_mul_f32 {pr(tt+i)}, {pr(tt+i)}, {pr(x0+i)}")
        if nw >= 2:
            w2early()
        for i in range(8):
            e(f"v_exp_f32_e32 v{tt+i}, v{tt+i}")
        if nw >= 3:
            w2early()
        for i in P:
            e(f"v_pk_add_f32 {pr(tt+i)}, {pr(tt+i)}, 1.0 op_sel_hi:[1,0]")
        for i in range(8):
            e(f"v_rcp_f32_e32 v{tt+i}, v{tt+i}")
        if nw >= 1:
            w2early()
        for i in P:
            e(f"v_pk_mul_f32 {pr(tt+i)}, {pr(tt+i)}, {pr(x0+i)}")
        for i in P:
            e(f"v_cvt_pk_bf16_f32 v{oo+i//2}, v{tt+i}, v{tt+i+1}")
        a.vmop(f"buffer_store_dwordx4 {vr(oo,4)}, v{vHS}, {srd(sWS)}, s{sHS0+tm} offen offset:{tf*1024+p*512} sc1", "hst")
    stamp("gelu")
    for _ in range(o.aw_n):
        w2early()
    e(f"s_cmp_eq_u32 s{sTAG}, 0")
    e("s_cbranch_scc1 L_late_tag")
    a.lab("L_have_tag")
    e(f"v_mov_b32 v{vTAG}, s{sTAG}")
    e("s_mov_b64 exec, 1")
    a.wait_vm("hst")
    e(f"buffer_store_dword v{vTAG}, off, {srd(sWS)}, s93 sc1")
    e("s_mov_b64 exec, -1")
    stamp("flag")
    nfirst = nxt[0]
    assert nfirst <= 60
    e(f"s_cmp_lg_u32 s{sLATE}, 0")
    e("s_cbranch_scc1 L_catchup")

    a.lab("L_rest")
    a.vm = []
    for j in range(nfirst, 70):
        if j == 70 - o.pp:
            a.vmop(f"buffer_load_dword v{vPOLL}, v{vPA1}, {srd(sWS)}, 0 offen sc1", "p1")
        w2load(j, force=(j == nfirst))
    if o.pp == 0:
        a.vmop(f"buffer_load_dword v{vPOLL}, v{vPA1}, {srd(sWS)}, 0 offen sc1", "p1")
    a.lab("L_join")
    a.c("h fragment bases per round, partial-sum addresses")
    for rho in range(4):
        e(f"s_add_u32 s{sT0}, s{sWV}, {1+rho}")
        e(f"s_and_b32 s{sT0}, s{sT0}, 3")
        if rho < 3:
            e(f"s_mul_i32 s{sT1}, s{sT0}, 15360")
            e(f"s_add_u32 s{sT1}, s{sT1}, {LDS_PART + rho*5120}")
            e(f"v_add_u32 v{vPW+rho}, s{sT1}, v{vL16}")
        e(f"s_lshl_b32 s{sT1}, s{sRT}, 2")
        e(f"s_add_u32 s{sT0}, s{sT0}, s{sT1}")
        e(f"s_mul_i32 s{sT0}, s{sT0}, 54")
        e(f"s_mul_i32 s{sT1}, s{sWV}, 14")
        e(f"s_add_u32 s{sT0}, s{sT0}, s{sT1}")
        e(f"s_lshl_b32 s{sT0}, s{sT0}, 10")
        for q in range(4):
            e(f"s_add_u32 s{sHB+4*rho+q}, s{sT0}, {WS_H + q*4096}")
    stamp("w2iss")
    a.wait_vm("p1")
    e(f"v_cmp_ne_u32 s[{sMSK}:{sMSK+1}], s{sTAG}, v{vPOLL}")
    e("s_nop 0")
    e(f"s_cmp_eq_u64 s[{sMSK}:{sMSK+1}], 0")
    e("s_cbranch_scc0 L_f1_slow")
    a.lab("L_f1_done")
    stamp("f1")

    def hload(q):
        rho, j = divmod(q, 14)
        v = vL16B if j >= 12 else vL16
        a.vmop(f"buffer_load_dwordx4 {vr(vH+4*(q%NHB),4)}, v{v}, {srd(sWS)}, s{sHB+4*rho+j//4} offen offset:{(j%4)*1024} sc1", f"h{q}")

    for q in range(NHB):
        hload(q)
    e(f"s_mul_i32 s{sT1}, s{sWV}, 15360")
    e(f"s_add_u32 s{sT1}, s{sT1}, {LDS_PART}")
    e(f"v_add_u32 v{vPR}, s{sT1}, v{vL16}")
    for t in range(5):
        d = vA2[3] + 4 * t
        e(f"v_lshlrev_b32 v{d}, 16, v{vB2+2*t}")
        e(f"v_and_b32 v{d+1}, 0xffff0000, v{vB2+2*t}")
        e(f"v_lshlrev_b32 v{d+2}, 16, v{vB2+2*t+1}")
        e(f"v_and_b32 v{d+3}, 0xffff0000, v{vB2+2*t+1}")
    a.c("output transpose addresses")
    vTW, vTR, vOA = vB2, vB2 + 1, vB2 + 4
    e(f"v_lshrrev_b32 v{t0}, 4, v{vLANE}")
    e(f"v_and_b32 v{t1}, 15, v{vLANE}")
    e(f"v_mul_u32_u24 v{t1}, 176, v{t1}")
    e(f"v_lshl_add_u32 v{t1}, v{t0}, 3, v{t1}")
    e(f"s_lshl_b32 s{sT0}, s{sWV}, 12")
    e(f"v_add_u32 v{vTW}, s{sT0}, v{t1}")
    for i in range(3):
        e(f"v_add_u32 v{t1}, {64*i}, v{vLANE}")
        e(f"v_mul_u32_u24 v{t2}, 205, v{t1}")
        e(f"v_lshrrev_b32 v{t2}, 11, v{t2}")
        e(f"v_mul_u32_u24 v{t3}, 10, v{t2}")
        e(f"v_sub_u32 v{t3}, v{t1}, v{t3}")
        e(f"v_lshlrev_b32 v{t3}, 4, v{t3}")
        e(f"v_mul_u32_u24 v{t4}, 176, v{t2}")
        e(f"v_add3_u32 v{vTR+i}, v{t4}, v{t3}, s{sT0}")
        e(f"v_mul_u32_u24 v{t4}, 1280, v{t2}")
        e(f"v_add_u32 v{vOA+i}, v{t4}, v{t3}")
    e(f"v_mov_b32 v{t4}, {OOB}")
    e(f"v_cmp_gt_u32 vcc, 32, v{vLANE}")
    e(f"s_lshl_b32 s{sT1}, s{sRT}, 2")
    e(f"s_add_u32 s{sT1}, s{sT1}, s{sWV}")
    e(f"v_cndmask_b32 v{vOA+2}, v{t4}, v{vOA+2}, vcc")
    e(f"s_mul_i32 s{sT1}, s{sT1}, {16*1280}")
    e(f"s_mul_i32 s{sT2}, s{sNT}, 160")
    e(f"s_add_u32 s{sHS0}, s{sT1}, s{sT2}")

    pend = []
    a.wait_vm("h0")
    stamp("h0")
    for q in range(56):
        rho, j = divmod(q, 14)
        for t in range(5):
            d = vr(vA2[rho] + 4 * t, 4)
            c = "0" if (j == 0 and rho < 3) else d
            e(f"v_mfma_f32_16x16x32_bf16 {d}, {w2reg(5*j+t)}, {vr(vH+4*(q%NHB),4)}, {c}")
            if t == 0 and q >= 1 and q - 1 + NHB < 56:
                hload(q - 1 + NHB)
            if t == 2 and pend:
                e(pend.pop(0))
            if t == 3 and rho == 3 and j >= 10:
                for _ in range(2):
                    if pend:
                        e(pend.pop(0))
            if t == 1 and rho == 3 and j >= 10:
                for _ in range(2):
                    if pend:
                        e(pend.pop(0))
        if q + 1 < 56:
            a.wait_vm(f"h{q+1}")
        if j == 1 and rho >= 1:
            pend += [f"ds_write_b128 v{vPW+rho-1}, {vr(vA2[rho-1]+4*t,4)} offset:{t*1024}" for t in range(5)]
        if rho == 3 and j == 6:
            e("s_waitcnt lgkmcnt(0)")
            e("s_barrier")
            for r2 in range(3):
                for t in range(5):
                    e(f"ds_read_b128 {vr(vA2[r2]+4*t,4)}, v{vPR} offset:{r2*5120+t*1024}")
        if rho == 3 and j == 9:
            e("s_waitcnt lgkmcnt(0)")
            pend += [f"v_pk_add_f32 {pr(vA2[0]+i)}, {pr(vA2[0]+i)}, {pr(vA2[1]+i)}" for i in range(0, 20, 2)]
            pend += [f"v_pk_add_f32 {pr(vA2[0]+i)}, {pr(vA2[0]+i)}, {pr(vA2[2]+i)}" for i in range(0, 20, 2)]
    while pend:
        e(pend.pop(0))
    stamp("p2end")
    e("s_nop 3")
    for t in range(5):
        for i in (4 * t, 4 * t + 2):
            e(f"v_pk_add_f32 {pr(vA2[0]+i)}, {pr(vA2[0]+i)}, {pr(vA2[3]+i)}")
        for i in (2 * t, 2 * t + 1):
            e(f"v_cvt_pk_bf16_f32 v{vA2[1]+i}, v{vA2[0]+2*i}, v{vA2[0]+2*i+1}")
        e(f"ds_write_b64 v{vTW}, {vr(vA2[1]+2*t,2)} offset:{32*t}")
    e("s_waitcnt lgkmcnt(0)")
    for i in range(3):
        e(f"ds_read_b128 {vr(vA2[2]+4*i,4)}, v{vTR+i}")
    for i in range(3):
        e(f"s_waitcnt lgkmcnt({2-i})")
        e(f"buffer_store_dwordx4 {vr(vA2[2]+4*i,4)}, v{vOA+i}, {srd(sOUT)}, s{sHS0} offen {o.oaux}")
    a.lab("L_fin")
    if o.stamps or o.span:
        stamp("st")
        e("s_waitcnt vmcnt(0)")
        e(f"s_memtime s[{sT0}:{sT1}]")
        e(f"s_memrealtime s[{sT2}:{sT3}]")
        e("s_waitcnt lgkmcnt(0)")
        e(f"v_mov_b32 v{t0}, 0")
        e(f"v_writelane_b32 v{t0}, s98, 0")
        e(f"v_writelane_b32 v{t0}, s100, 1")
        e(f"v_writelane_b32 v{t0}, s{sT0}, 2")
        e(f"v_writelane_b32 v{t0}, s{sT2}, 3")
        for n, k in enumerate(smap):
            e(f"v_writelane_b32 v{t0}, s{smap[k]}, {4+n}")
        e(f"s_lshl_b32 s{sT0}, s2, 2")
        e(f"s_add_u32 s{sT0}, s{sT0}, s{sWV}")
        e(f"s_lshl_b32 s{sT0}, s{sT0}, 8")
        e(f"s_add_u32 s{sT0}, s{sT0}, {WS_STAMP}")
        e(f"v_lshlrev_b32 v{t1}, 2, v{vLANE}")
        e(f"buffer_store_dword v{t0}, v{t1}, {srd(sWS)}, s{sT0} offen")
    a.lab("L_end")
    e("s_endpgm")

    a.lab("L_late")
    e(f"s_mov_b32 s{sLATE}, 1")
    e(f"v_mov_b32 v{vL16W}, {OOB}")
    e("s_branch L_late_done")
    a.lab("L_late_tag")
    spin_tag("L_lt")
    e("s_branch L_have_tag")
    a.lab("L_f1_slow")
    spin("L_f1", vPA1)
    e("s_branch L_f1_done")
    a.lab("L_nogelu")
    e(f"s_cmp_lg_u32 s{sLATE}, 0")
    e("s_cbranch_scc1 L_catchup")
    for j in range(nearly, nfirst):
        w2load(j, force=(j == nearly))
    e("s_branch L_rest")
    a.lab("L_catchup")
    spin_tag("L_ct")
    spin("L_cf", vPA2)
    for j in range(nfirst):
        w2load(j)
    e("s_branch L_rest")

    a.lab("L_helper")
    sH = sRB
    sS = sCT
    e(f"s_lshl_b32 s{sH}, s{sJ}, 2")
    e(f"s_add_u32 s{sH}, s{sH}, s{sI}")
    e(f"s_sub_u32 s{sH}, s{sH}, 28")
    e(f"s_lshl_b32 s{sS}, s{sH}, 1")
    e(f"s_add_u32 s{sS}, s{sS}, s{sWM}")
    e(f"v_lshrrev_b32 v{t0}, 3, v{vLANE}")
    e(f"v_mul_u32_u24 v{t0}, 1280, v{t0}")
    e(f"v_and_b32 v{t1}, 7, v{vLANE}")
    e(f"v_lshrrev_b32 v{t2}, 4, v{vLANE}")
    e(f"v_lshlrev_b32 v{t3}, 1, v{t2}")
    e(f"v_xor_b32 v{t1}, v{t1}, v{t3}")
    e(f"v_lshl_add_u32 v{vXD}, v{t1}, 4, v{t0}")
    for n in range(1, 4):
        e(f"v_add_u32 v{vXD+n}, {n*(10240-1024)}, v{vXD}")
    e(f"s_mul_i32 s{sXO}, s{sS}, {32*1280}")
    e(f"s_mul_i32 s{sT0}, s{sWF}, 640")
    e(f"s_add_u32 s{sXO}, s{sXO}, s{sT0}")
    e(f"s_mul_i32 s{sMX}, s{sWV}, 20480")
    e("s_waitcnt lgkmcnt(0)")
    e(f"s_cmp_ge_u32 s{sH}, 27")
    e("s_cbranch_scc1 L_noconv")
    mk_srd(sW2, sKA + 6, F * D * 2)
    a.vm = []
    for cb in range(5):
        e(f"s_add_u32 m0, s{sMX}, {cb*4096}")
        e(f"s_add_u32 s{sT0}, s{sXO}, {cb*128}")
        for n in range(4):
            a.vmop(f"buffer_load_dwordx4 v{vXD+n}, {srd(sW2)}, s{sT0} offen offset:{n*1024} lds", f"c{cb}")
    common_setup()
    a.c("transpose-read addresses: row = 16P + 4hf + (i>>2), key = (2hf + (i>>3)) & 3")
    e(f"v_lshrrev_b32 v{t0}, 5, v{vLANE}")
    e(f"v_bfe_u32 v{t1}, v{vLANE}, 4, 1")
    e(f"v_bfe_u32 v{t2}, v{vLANE}, 2, 2")
    e(f"v_lshl_add_u32 v{t2}, v{t1}, 2, v{t2}")
    e(f"v_lshl_add_u32 v{t2}, v{t0}, 4, v{t2}")
    e(f"v_bfe_u32 v{t3}, v{t2}, 1, 2")
    e(f"v_and_b32 v{t4}, 3, v{vLANE}")
    e(f"v_lshlrev_b32 v{t4}, 3, v{t4}")
    e(f"v_lshl_add_u32 v{t2}, v{t2}, 7, v{t4}")
    e(f"v_add_u32 v{t2}, s{sMX}, v{t2}")
    for u in range(4):
        e(f"v_xor_b32 v{t4}, {u}, v{t3}")
        e(f"v_lshl_add_u32 v{vXR+u}, v{t4}, 5, v{t2}")
    e(f"s_mul_i32 s{sT1}, s{sWF}, {4*54}")
    e(f"s_add_u32 s{sT1}, s{sT1}, s{sS}")
    e(f"s_mul_i32 s{sT1}, s{sT1}, 5120")
    e(f"s_add_u32 s{sT1}, s{sT1}, {WS_WP}")
    for cb in range(5):
        a.wait_vm(f"c{cb}")
        for u in range(4):
            for h in range(2):
                e(f"ds_read_b64_tr_b16 {vr(vACC+16*cb+4*u+2*h,2)}, v{vXR+u} offset:{cb*4096+h*1024}")
        e("s_waitcnt lgkmcnt(0)")
        for u in range(4):
            ntl, t = divmod(4 * cb + u, 5)
            e(f"s_add_u32 s{sT0}, s{sT1}, {ntl*54*5120 + t*1024}")
            a.vmop(f"buffer_store_dwordx4 {vr(vACC+16*cb+4*u,4)}, v{vL16}, {srd(sWS)}, s{sT0} offen sc1", "cst")
    stamp("issued")
    spin_tag("L_ht")
    e(f"s_lshl_b32 s{sT0}, s{sWF}, 6")
    e(f"s_add_u32 s{sT0}, s{sT0}, s{sS}")
    e(f"s_lshl_b32 s{sT0}, s{sT0}, 2")
    e(f"s_add_u32 s{sT0}, s{sT0}, {WS_F2}")
    e("s_mov_b64 exec, 1")
    e(f"buffer_store_dword v{vTAG}, off, {srd(sWS)}, s{sT0} sc1")
    e("s_mov_b64 exec, -1")
    stamp("s0")
    a.lab("L_hwait")
    if o.p1only:
        e("s_branch L_fin")
    spin("L_hf", vPA2)
    stamp("p1end")
    a.c("second half first: these loads bring in what the other workgroups of the XCD read later")
    order = list(range(o.hrot, 70)) + list(range(o.hrot))
    for n, j in enumerate(order):
        if n == 70 - o.pp:
            a.vmop(f"buffer_load_dword v{vPOLL}, v{vPA1}, {srd(sWS)}, 0 offen sc1", "p1")
        w2load(j, force=(n == 0))
    if o.pp == 0:
        a.vmop(f"buffer_load_dword v{vPOLL}, v{vPA1}, {srd(sWS)}, 0 offen sc1", "p1")
    e("s_branch L_join")
    a.lab("L_noconv")
    common_setup()
    e(f"s_cmp_eq_u32 s{sH}, 31")
    e("s_cbranch_scc0 L_notpub")
    e(f"s_cmp_eq_u32 s{sWV}, 0")
    e("s_cbranch_scc0 L_notpub")
    a.c("publish this launch's tag: previous tag advanced by an odd constant, never zero")
    e(f"buffer_load_dword v{vTAG}, off, {srd(sWS)}, 0 offset:{WS_EPOCH} sc1")
    e("s_waitcnt vmcnt(0)")
    e(f"v_add_u32 v{vTAG}, 0x9e3779b9, v{vTAG}")
    e(f"v_mov_b32 v{t0}, 0x9e3779b9")
    e(f"v_cmp_eq_u32 vcc, 0, v{vTAG}")
    e("s_nop 1")
    e(f"v_cndmask_b32 v{vTAG}, v{vTAG}, v{t0}, vcc")
    e("s_mov_b64 exec, 1")
    e(f"buffer_store_dword v{vTAG}, off, {srd(sDBG)}, 0 sc1")
    e(f"buffer_store_dword v{vTAG}, off, {srd(sWS)}, 0 offset:{WS_EPOCH} sc1")
    e("s_mov_b64 exec, -1")
    a.lab("L_notpub")
    spin_tag("L_ht2")
    e("s_branch L_hwait")
    a.lab("L_code_end")

    head = [
        "; Fused MLP: out = gelu_tanh(x @ w1 + b1) @ w2 + b2, bf16, x 2048x640, w1 640x1728, w2 1728x640.",
        "; kernarg: 0 x, 8 w1, 16 b1, 24 w2, 32 b2, 40 out, 48 debug (zeroed), 56 workspace",
        f"; @launch grid=(256,1,1) block=(256,1,1) lds={LDS_BYTES}",
        '.amdgcn_target "amdgcn-amd-amdhsa--gfx950"',
        ".text",
        f".globl {KNAME}",
        ".p2align 8",
        f".type {KNAME},@function",
    ]
    if o.stamps:
        head.insert(2, "; stamps: " + o.stamps)
    tail = [
        '.section .rodata,"a"',
        ".p2align 6",
        f".amdhsa_kernel {KNAME}",
        "  .amdhsa_next_free_vgpr 512",
        "  .amdhsa_next_free_sgpr 102",
        "  .amdhsa_accum_offset 256",
        "  .amdhsa_group_segment_fixed_size 0",
        "  .amdhsa_kernarg_size 64",
        "  .amdhsa_user_sgpr_count 2",
        "  .amdhsa_user_sgpr_kernarg_segment_ptr 1",
        "  .amdhsa_system_sgpr_workgroup_id_x 1",
        ".end_amdhsa_kernel",
    ]
    return "\n".join(head + a.l + tail) + "\n"


if __name__ == "__main__":
    ap = argparse.ArgumentParser()
    ap.add_argument("-o", default="standalone__dense_activation_gelu__prompt.s")
    ap.add_argument("--stamps", default="")
    ap.add_argument("--span", type=int, default=0)
    ap.add_argument("--xshift", type=int, default=1)
    ap.add_argument("--chk", type=int, default=8)
    ap.add_argument("--pw_n", type=int, default=8)
    ap.add_argument("--gw_groups", type=int, default=6)
    ap.add_argument("--gw_n", type=int, default=2)
    ap.add_argument("--aw_n", type=int, default=6)
    ap.add_argument("--pp", type=int, default=8)
    ap.add_argument("--hrot", type=int, default=36)
    ap.add_argument("--codepf", type=int, default=1)
    ap.add_argument("--p1only", type=int, default=0)
    ap.add_argument("--oaux", default="")
    o = ap.parse_args()
    open(o.o, "w").write(build(o))
```
